```python
import torch

def _softmax(x, axis=-1):
    return torch.softmax(x, dim=axis)

def _gelu(x):
    return torch.nn.functional.gelu(x, approximate='tanh')

def _silu(x):
    return torch.nn.functional.silu(x)

def _sigmoid(x):
    return torch.sigmoid(x)

def _layernorm(x, axis=-1, eps=1e-05):
    m = x.mean(dim=axis, keepdim=True)
    v = x.var(dim=axis, keepdim=True, unbiased=False)
    return (x - m) / torch.sqrt(v + eps)

def _scatter_add(tgt, idx, src, axis=0):
    return tgt.clone().index_add_(axis, idx, src)

def _segment_sum(src, seg, n):
    out = torch.zeros((n,) + src.shape[1:], dtype=src.dtype)
    return out.index_add_(0, seg, src)

def _pad(x, pw):
    flat = tuple((v for pair in reversed(pw) for v in pair))
    return torch.nn.functional.pad(x, flat)
kernel_name = 'sequential_preLN__ssm_conv_s4d__mixer_gmlp__prompt'

def setup_inputs():

    _w = lambda a: (lambda t: t.to(torch.bfloat16) if t.is_floating_point() else t)(torch.as_tensor(a))

    def _A_setup():
        Bsz, L, D, N = (1, 2048, 640, 128)
        return {'u': _w((lambda *s: torch.randn(*s, dtype=torch.bfloat16) * 0.05)(Bsz, L, D)), 'log_A_real': _w((lambda *s: torch.randn(*s, dtype=torch.bfloat16) * 6.4)(D, N) * 0.5), 'A_imag': _w((lambda *s: torch.randn(*s, dtype=torch.bfloat16) * 0.05)(D, N) * 3.14), 'C_real': _w((lambda *s: torch.randn(*s, dtype=torch.bfloat16) * 0.05)(D, N) / N ** 0.5), 'C_imag': _w((lambda *s: torch.randn(*s, dtype=torch.bfloat16) * 0.05)(D, N) / N ** 0.5), 'log_dt': _w((lambda *s: torch.randn(*s, dtype=torch.bfloat16) * 0.05)(D) * 0.5 - 4.0), 'D_skip': _w((lambda *s: torch.randn(*s, dtype=torch.bfloat16) * 0.05)(D))}
    _A_in = _A_setup()

    def _B_setup():
        B, S, D, F = (1, 2048, 640, 1728)
        Fh = F // 2
        return {'x': _w((lambda *s: torch.randn(*s, dtype=torch.bfloat16) * 0.05)(B, S, D)), 'w_in': _w((lambda *s: torch.randn(*s, dtype=torch.bfloat16) * 0.4)(D, 2 * Fh)), 'w_sp': _w(0.01 * (lambda *s: torch.randn(*s, dtype=torch.bfloat16) * 0.4)(S, S)), 'b_sp': _w(1.0 + 0.01 * (lambda *s: torch.randn(*s, dtype=torch.bfloat16) * 0.05)(S)), 'w_out': _w((lambda *s: torch.randn(*s, dtype=torch.bfloat16) * 0.05)(Fh, D))}
    _B_in = _B_setup()
    return {'A_u': _A_in['u'], 'A_log_A_real': _A_in['log_A_real'], 'A_A_imag': _A_in['A_imag'], 'A_C_real': _A_in['C_real'], 'A_C_imag': _A_in['C_imag'], 'A_log_dt': _A_in['log_dt'], 'A_D_skip': _A_in['D_skip'], 'B_x': _B_in['x'], 'B_w_in': _B_in['w_in'], 'B_w_sp': _B_in['w_sp'], 'B_b_sp': _B_in['b_sp'], 'B_w_out': _B_in['w_out']}

def reference(A_u, A_log_A_real, A_A_imag, A_C_real, A_C_imag, A_log_dt, A_D_skip, B_x, B_w_in, B_w_sp, B_b_sp, B_w_out):

    def _A_ref(u, log_A_real, A_imag, C_real, C_imag, log_dt, D_skip):
        L = u.shape[1]
        dt = torch.exp(log_dt)
        A = -torch.exp(log_A_real) + 1j * A_imag
        C = (C_real + 1j * C_imag) * dt[:, None]
        pos = (lambda x, dt: x.to(dt))(torch.arange(L), log_dt.dtype)
        P = torch.exp((A * dt[:, None])[:, :, None] * pos[None, None, :])
        K = 2.0 * torch.einsum('dn,dnl->dl', C, P).real
        L2 = 2 * L
        u_t = (lambda x, *d: x.permute(*d))(u, 0, 2, 1)
        Kf = (lambda x, *a, **k: torch.fft.rfft(x.float(), *a, **k))(K, L2)
        Uf = (lambda x, *a, **k: torch.fft.rfft(x.float(), *a, **k))(u_t, L2)
        y = (lambda x, *a, **k: torch.fft.irfft(x, *a, **k).to(torch.bfloat16))(Uf * Kf[None, :, :], L2)[:, :, :L]
        y = (lambda x, *d: x.permute(*d))(y, 0, 2, 1)
        return y + u * D_skip[None, None, :]

    def _B_ref(x, w_in, w_sp, b_sp, w_out):
        B, S, D = x.shape
        F = w_in.shape[-1]
        Fh = F // 2
        z = _gelu(torch.einsum('bsd,df->bsf', x, w_in))
        z1 = z[..., :Fh].clone()
        z2 = _layernorm(z[..., Fh:], axis=-1)
        g = torch.einsum('ts,bsf->btf', w_sp, z2) + b_sp[None, :, None]
        return torch.einsum('bsf,fd->bsd', z1 * g, w_out)
    x = A_u
    h = x + _A_ref(_layernorm(x, axis=-1), A_log_A_real, A_A_imag, A_C_real, A_C_imag, A_log_dt, A_D_skip)
    h2 = h + _B_ref(_layernorm(h, axis=-1), B_w_in, B_w_sp, B_b_sp, B_w_out)
    return h2
```

```python
import re

TRANS = ('v_exp_f32', 'v_log_f32', 'v_rcp_f32', 'v_rsq_f32', 'v_sqrt_f32', 'v_sin_f32', 'v_cos_f32', 'v_rcp_iflag_f32')
REG_RE = re.compile(r'^(-|\|)?(?:abs\(|neg\()?([vsa])(?:(\d+)|\[(\d+):(\d+)\])\)?\|?$')

def parse_reg(tok):
    tok = tok.strip()
    if tok in ('vcc', 'exec'):
        return [(tok, 0), (tok, 1)]
    if tok in ('vcc_lo', 'exec_lo'): return [(tok[:-3], 0)]
    if tok in ('vcc_hi', 'exec_hi'): return [(tok[:-3], 1)]
    if tok == 'm0': return [('m0', 0)]
    m = REG_RE.match(tok)
    if not m: return []
    k = m.group(2)
    if m.group(3) is not None:
        return [(k, int(m.group(3)))]
    return [(k, i) for i in range(int(m.group(4)), int(m.group(5)) + 1)]

def split_ops(s):
    out, depth, cur = [], 0, ''
    for ch in s:
        if ch in '[(': depth += 1
        if ch in '])': depth -= 1
        if ch == ',' and depth == 0:
            out.append(cur.strip()); cur = ''
        else:
            cur += ch
    if cur.strip(): out.append(cur.strip())
    return out

class Ins:
    __slots__ = ('text', 'mn', 'ops', 'mods', 'defs', 'uses', 'kind', 'passes', 'srcc', 'srcab', 'dpp', 'lds_dma', 'wide_store', 'store_data', 'lanesel', 'ws')
    def __init__(self, text):
        self.text = text
        t = text.split(';')[0].strip()
        parts = t.split(None, 1)
        self.mn = mn = parts[0]
        rest = parts[1] if len(parts) > 1 else ''
        ops = split_ops(rest)
        mods = []
        if ops:
            last = ops[-1]
            depth = 0; cut = None
            for i, ch in enumerate(last):
                if ch in '[(': depth += 1
                if ch in '])': depth -= 1
                if ch == ' ' and depth == 0:
                    cut = i; break
            if cut is not None:
                mods = last[cut:].split(); ops[-1] = last[:cut]
        self.ops, self.mods = ops, mods
        self.defs, self.uses = [], []
        self.passes = 0; self.srcc = []; self.srcab = []
        self.dpp = ('_dpp' in mn) or any(m.startswith(('row_', 'quad_perm', 'wave_')) for m in mods)
        self.lds_dma = False; self.wide_store = False; self.store_data = []; self.lanesel = []
        self.ws = 1
        R = [parse_reg(o) for o in ops]
        base = re.sub(r'_(e32|e64|dpp|sdwa)$', '', mn)
        if mn.startswith('v_mfma') or mn.startswith('v_smfmac'):
            self.kind = 'mfma'
            self.defs = R[0]; self.srcab = R[1] + R[2]; self.srcc = R[3]; self.uses = R[1] + R[2] + R[3]
            if '32x32x16' in mn or '32x32x8' in mn: self.passes = 8
            elif '16x16x32' in mn or '16x16x16' in mn: self.passes = 4
            elif '4x4x4' in mn: self.passes = 2
            else: raise ValueError('unknown mfma ' + mn)
        elif mn.startswith('v_'):
            self.kind = 'valu'
            if base in TRANS: self.kind = 'trans'
            if base.startswith('v_dot'): self.kind = 'dot'
            if base.startswith('v_cmp'):
                self.defs = R[0]; self.uses = sum(R[1:], [])
                if base.startswith('v_cmpx'): self.defs = self.defs + [('exec', 0), ('exec', 1)]
            elif base in ('v_add_co_u32', 'v_sub_co_u32', 'v_subrev_co_u32', 'v_addc_co_u32', 'v_subb_co_u32', 'v_div_scale_f32', 'v_mad_u64_u32'):
                self.defs = R[0] + R[1]; self.uses = sum(R[2:], [])
            elif base.startswith('v_permlane') or base == 'v_swap_b32':
                self.defs = R[0] + R[1]; self.uses = R[0] + R[1]
            else:
                self.defs = R[0]; self.uses = sum(R[1:], [])
                if base in ('v_fmac_f32', 'v_dot2c_f32_bf16', 'v_pk_fmac_f16', 'v_writelane_b32', 'v_mac_f32') or self.dpp or 'sdwa' in mn:
                    self.uses = self.uses + R[0]
                if base in ('v_readlane_b32', 'v_writelane_b32'):
                    self.lanesel = R[2]
                if base == 'v_div_fmas_f32': self.uses = self.uses + [('vcc', 0), ('vcc', 1)]
        elif mn.startswith('buffer_') or mn.startswith('global_'):
            self.kind = 'vmem'
            if mn in ('buffer_inv', 'buffer_wbl2'):
                pass
            elif mn.startswith('buffer_load'):
                if 'lds' in mods:
                    self.lds_dma = True; self.uses = sum(R, []) + [('m0', 0)]
                else:
                    self.defs = R[0]; self.uses = sum(R[1:], [])
                    if 'd16' in mn: self.uses = self.uses + R[0]
            elif mn.startswith('buffer_store') or mn.startswith('buffer_atomic'):
                self.uses = sum(R, []); self.store_data = R[0]
                if mn.startswith('buffer_atomic') and 'sc0' in mods: self.defs = R[0]
                self.wide_store = len(R[0]) >= 3
            elif mn.startswith('global_load_lds'):
                self.lds_dma = True; self.uses = sum(R, []) + [('m0', 0)]
            elif mn.startswith('global_load'):
                self.defs = R[0]; self.uses = sum(R[1:], [])
            elif mn.startswith('global_store'):
                self.uses = sum(R, []); self.store_data = R[1]; self.wide_store = len(R[1]) >= 3
            else:
                raise ValueError('unhandled vmem ' + mn)
        elif mn.startswith('ds_'):
            self.kind = 'ds'
            if mn.startswith('ds_read') or 'permute' in mn or 'swizzle' in mn or '_rtn' in mn:
                self.defs = R[0]; self.uses = sum(R[1:], [])
                if 'd16' in mn: self.uses = self.uses + R[0]
            else:
                self.uses = sum(R, [])
        elif mn.startswith('s_'):
            self.kind = 'salu'
            if mn == 's_nop':
                self.ws = int(ops[0], 0) + 1
            elif mn.startswith(('s_cmp', 's_cbranch', 's_waitcnt', 's_barrier', 's_setprio', 's_sleep', 's_branch', 's_endpgm', 's_bitcmp', 's_setreg')):
                self.uses = sum(R, [])
            elif mn.startswith('s_load') or mn.startswith('s_buffer_load') or mn.startswith('s_memtime') or mn.startswith('s_memrealtime'):
                self.kind = 'smem'; self.defs = R[0]; self.uses = sum(R[1:], [])
            else:
                self.defs = R[0]; self.uses = sum(R[1:], [])
                if 'saveexec' in mn: self.defs = self.defs + [('exec', 0), ('exec', 1)]
        else:
            raise ValueError('unknown instr: ' + text)

def isv(regs): return [r for r in regs if r[0] in ('v', 'a')]
def iss(regs): return [r for r in regs if r[0] in ('s', 'vcc')]

def required(prod, cons):
    need = 0
    pk, ck = prod.kind, cons.kind
    pv = pk in ('valu', 'trans', 'dot'); cv = ck in ('valu', 'trans', 'dot')
    pd = set(prod.defs); cu = set(cons.uses); cd = set(cons.defs)
    raw = pd & cu; waw = pd & cd
    rawv = {r for r in raw if r[0] in ('v', 'a')}
    raws = {r for r in raw if r[0] in ('s', 'vcc')}
    if pv:
        if rawv:
            if ck == 'mfma': need = max(need, 2)
            if cv and cons.dpp: need = max(need, 2)
            if cons.mn.startswith(('v_readlane', 'v_readfirstlane')): need = max(need, 1)
            if cons.mn.startswith('v_permlane'): need = max(need, 2)
            if pk == 'trans': need = max(need, 1)
            if 'sdwa' in prod.mn or any(m.startswith('op_sel') for m in prod.mods) and not prod.mn.startswith(('v_pk_', 'v_dot')):
                need = max(need, 1)
        if raws:
            if cv: need = max(need, 2)
            if pd & set(cons.lanesel): need = max(need, 4)
            if ck == 'vmem': need = max(need, 5)
            if ck in ('salu', 'smem'): need = max(need, 1)
        if ('exec', 0) in pd:
            if cv or ck == 'mfma': need = max(need, 5)
        if pk == 'dot' and (rawv or {r for r in waw if r[0] in ('v', 'a')}):
            same = re.sub(r'_(e32|e64)$', '', prod.mn) == re.sub(r'_(e32|e64)$', '', cons.mn)
            if same:
                ab = set(sum([parse_reg(o) for o in cons.ops[1:3]], []))
                if pd & ab: need = max(need, 3)
            else:
                need = max(need, 3)
    if pk == 'mfma':
        p = prod.passes
        big = {2: 5, 4: 8, 8: 12, 16: 20}[p]
        ovl = {2: 4, 4: 6, 8: 10, 16: 18}[p]
        if ck == 'mfma':
            if pd & set(cons.srcab): need = max(need, big)
            if pd & set(cons.srcc):
                if prod.defs == cons.srcc and prod.passes == cons.passes:
                    need = max(need, 2 if p == 2 else 0)
                else:
                    need = max(need, ovl)
            elif waw:
                need = max(need, ovl)
        else:
            if rawv or waw: need = max(need, big)
        if cv and (set(prod.srcc) & cd):
            need = max(need, {2: 1, 4: 3, 8: 7, 16: 15}[p])
    if pk == 'salu' and ('m0', 0) in pd and cons.lds_dma:
        need = max(need, 1)
    if prod.wide_store and (set(prod.store_data) & cd):
        need = max(need, 2 if cv else 1)
    return need

WINDOW = 22

class Kernel:
    def __init__(self, name, lds=0, grid=256, block=256):
        self.name = name; self.items = []; self.lds = lds; self.grid = grid; self.block = block
        self.nv = 0; self.ns = 0; self.uid = 0
        self.max_v = -1; self.max_s = -1; self.max_a = -1
    def v(self, n=1, align=None):
        al = align or (1 if n == 1 else 2)
        b = (self.nv + al - 1) // al * al; self.nv = b + n; return b
    def s(self, n=1, align=None):
        al = align or (1 if n == 1 else (2 if n == 2 else 4))
        b = (self.ns + al - 1) // al * al; self.ns = b + n; return b
    def lbl(self, base):
        self.uid += 1; return f'L_{self.name}_{base}_{self.uid}'
    def label(self, name): self.items.append(('label', name))
    def c(self, text): self.items.append(('comment', text))
    def __call__(self, text):
        for line in text.split('\n'):
            line = line.strip()
            if not line or line.startswith(';'): continue
            if line.endswith(':'):
                self.label(line[:-1]); continue
            self.items.append(('ins', Ins(line)))
    def raw_items(self, items): self.items.extend(items)
    def finalize(self):
        out = []
        def pad_for(hist, ins):
            need = 0; dist = 0
            for p in reversed(hist[-WINDOW:]):
                r = required(p, ins)
                if r - dist > need: need = r - dist
                dist += p.ws
                if dist > 20: break
            return need
        def nops(n):
            res = []
            while n > 0:
                k = min(n, 16); res.append(Ins(f's_nop {k-1}')); n -= k
            return res
        hist = []
        for it in self.items:
            if it[0] != 'ins':
                out.append(it); continue
            ins = it[1]
            n = pad_for(hist, ins)
            for q in nops(n):
                out.append(('ins', q)); hist.append(q)
            out.append(it); hist.append(ins)
            if ins.mn in ('s_branch', 's_endpgm'): hist = []
        changed = True
        while changed:
            changed = False
            pos = {it[1]: i for i, it in enumerate(out) if it[0] == 'label'}
            for i, it in enumerate(out):
                if it[0] == 'ins' and (it[1].mn.startswith('s_cbranch') or it[1].mn == 's_branch'):
                    tgt = it[1].ops[0]
                    if tgt not in pos: raise ValueError('missing label ' + tgt)
                    h = []
                    j = i
                    while j >= 0 and len(h) < WINDOW:
                        if out[j][0] == 'ins':
                            if j != i and out[j][1].mn in ('s_branch', 's_endpgm'): break
                            h.append(out[j][1])
                        j -= 1
                    h.reverse()
                    need = 0; j = pos[tgt]; cnt = 0; hh = list(h)
                    while j < len(out) and cnt < WINDOW:
                        if out[j][0] == 'ins':
                            x = out[j][1]
                            dist = sum(p.ws for p in hh[len(h):])
                            d2 = dist
                            for p in reversed(h):
                                r = required(p, x)
                                if r - d2 > need: need = r - d2
                                d2 += p.ws
                                if d2 > 20: break
                            hh.append(x); cnt += 1
                            if x.mn in ('s_branch', 's_endpgm'): break
                        j += 1
                    if need > 0:
                        for q in reversed(nops(need)): out.insert(i, ('ins', q))
                        changed = True
                        break
        lines = []
        for it in out:
            if it[0] == 'label': lines.append(it[1] + ':')
            elif it[0] == 'comment': lines.append('    ; ' + it[1])
            else:
                lines.append('    ' + it[1].text)
                for r in it[1].defs + it[1].uses:
                    if r[0] == 'v': self.max_v = max(self.max_v, r[1])
                    if r[0] == 's': self.max_s = max(self.max_s, r[1])
                    if r[0] == 'a': self.max_a = max(self.max_a, r[1])
        return '\n'.join(lines)
    def text(self):
        body = self.finalize()
        return f'.globl {self.name}\n.p2align 8\n.type {self.name},@function\n{self.name}:\n{body}\n'
    def desc(self):
        nv = self.max_v + 1
        acc = max(4, (nv + 3) // 4 * 4)
        tot = acc + self.max_a + 1 if self.max_a >= 0 else nv
        ns = max(self.max_s + 1, 16)
        assert nv <= 256 and tot <= 512 and ns <= 102, (nv, tot, ns)
        return f'''.p2align 6
.amdhsa_kernel {self.name}
  .amdhsa_next_free_vgpr {tot}
  .amdhsa_next_free_sgpr {ns}
  .amdhsa_accum_offset {acc}
  .amdhsa_group_segment_fixed_size 0
  .amdhsa_kernarg_size 120
  .amdhsa_user_sgpr_count 2
  .amdhsa_user_sgpr_kernarg_segment_ptr 1
  .amdhsa_system_sgpr_workgroup_id_x 1
.end_amdhsa_kernel
'''

def V(b, n=1): return f'v{b}' if n == 1 else f'v[{b}:{b+n-1}]'
def S(b, n=1): return f's{b}' if n == 1 else f's[{b}:{b+n-1}]'
def A(b, n=1): return f'a{b}' if n == 1 else f'a[{b}:{b+n-1}]'

def build_file(kernels, header=''):
    s = header
    for k in kernels:
        s += f'; @launch kernel={k.name} grid=({k.grid},1,1) block=({k.block},1,1) lds={k.lds}\n'
    s += '.amdgcn_target "amdgcn-amd-amdhsa--gfx950"\n.text\n'
    seen = []
    for k in kernels:
        if k in seen: continue
        seen.append(k); s += k.text()
    s += '.section .rodata,"a"\n'
    for k in seen: s += k.desc()
    return s

import struct
def f2u(x): return struct.unpack('<I', struct.pack('<f', x))[0]
def fhex(x): return '0x%08x' % f2u(x)
```

```python
from asmgen import *
import math
KA = dict(u=0, logA=8, Aim=16, Cr=24, Ci=32, ldt=40, Dsk=48, Bx=56, win=64, wsp=72, bsp=80, wout=88, out=96, dbg=104, ws=112)
L = 2048; D = 640; F = 1728; FH = 864
WS_UT = 0x0000000
WS_XT = 0x0280000
WS_KT = 0x0500000; KT_STRIDE = 8320; KT_HALF = 4160
WS_HT = 0x0A80000
WS_H  = 0x0D00000
WS_CS = 0x0F80000
WS_ST = 0x0F90000; ST_BYTES = 0x20000
WS_Z1 = 0x1000000
WS_Z2 = 0x1400000
WS_P  = 0x1800000
LOG2E = 1.4426950408889634
INV2PI = 1.0 / (2 * math.pi)

def load_ptr(k, dst, name):
    k(f's_load_dwordx2 {S(dst,2)}, s[0:1], {KA[name]}')

def mk_srd(k, dst, src, nbytes, off=0):
    if off:
        k(f's_add_u32 {S(dst)}, {S(src)}, {hex(off)}')
        k(f's_addc_u32 {S(dst+1)}, {S(src+1)}, 0')
    else:
        k(f's_mov_b32 {S(dst)}, {S(src)}')
        k(f's_mov_b32 {S(dst+1)}, {S(src+1)}')
    k(f's_mov_b32 {S(dst+2)}, {hex(nbytes)}')
    k(f's_mov_b32 {S(dst+3)}, 0x00020000')

def rbf(k, dst, src):
    k(f'v_cvt_pk_bf16_f32 {V(dst)}, {V(src)}, {V(src)}')
    k(f'v_lshlrev_b32 {V(dst)}, 16, {V(dst)}')

def unpack(k, lo, hi, src):
    k(f'v_lshlrev_b32 {V(lo)}, 16, {V(src)}')
    k(f'v_and_b32 {V(hi)}, 0xffff0000, {V(src)}')

import os
STAMPS = os.environ.get('STAMPS', '0') == '1'
WS_DBG = 0x2000000
STAMP_BASE = 68
def stamp(k, i, real=False):
    if not STAMPS: return
    r = STAMP_BASE + 2 * i
    if i == 0:
        for j in range(12): k(f's_mov_b32 {S(STAMP_BASE + 2*j)}, 0')
    k(f'{"s_memrealtime" if real else "s_memtime"} {S(r,2)}')
    k('s_waitcnt lgkmcnt(0)')
def dump_stamps(k, sWS, kidx, n, vtmp, waveshift=6):
    if not STAMPS: return
    q = STAMP_BASE + 28
    k(f's_add_u32 {S(q)}, {S(sWS)}, {hex(WS_DBG + kidx * 0x100000)}')
    k(f's_addc_u32 {S(q+1)}, {S(sWS+1)}, 0')
    k(f's_mov_b32 {S(q+2)}, 0x100000')
    k(f's_mov_b32 {S(q+3)}, 0x00020000')
    k(f'v_lshrrev_b32 {V(vtmp)}, 6, v0')
    k(f'v_lshlrev_b32 {V(vtmp)}, 6, {V(vtmp)}')
    k(f's_lshl_b32 {S(STAMP_BASE+27)}, s2, 10')
    k(f'v_add_u32 {V(vtmp)}, {S(STAMP_BASE+27)}, {V(vtmp)}')
    k('s_mov_b64 exec, 1')
    for i in range(n):
        k(f'v_mov_b32 {V(vtmp+1)}, {S(STAMP_BASE + 2*i)}')
        k(f'buffer_store_dword {V(vtmp+1)}, {V(vtmp)}, {S(q,4)}, 0 offen offset:{4*i}')
    k('s_mov_b64 exec, -1')
```

```python
from common import *

N_LN = 256; N_KG = 640; N_CS = 27
def gen_k1():
    k = Kernel('p1_kernel', lds=24576, grid=N_LN + N_KG + N_CS, block=256)
    k.ns = 4; k.nv = 1
    L_kg = k.lbl('kgen'); L_cs = k.lbl('cs'); L_end = k.lbl('end')
    sWS = k.s(2); sP = k.s(2)
    k(f's_cmp_ge_u32 s2, {N_LN + N_KG + N_CS}')
    k(f's_cbranch_scc1 {L_end}')
    stamp(k, 0, True); stamp(k, 1)
    load_ptr(k, sWS, 'ws')
    k(f's_cmp_ge_u32 s2, {N_LN + N_KG}')
    k(f's_cbranch_scc1 {L_cs}')
    k(f's_cmp_ge_u32 s2, {N_LN}')
    k(f's_cbranch_scc1 {L_kg}')
    ns0, nv0 = k.ns, k.nv
    RS = 336; XOFF = 32 * RS
    load_ptr(k, sP, 'u')
    sX = k.s(); sQ = k.s(); sT0 = k.s(); sCQ = k.s(); sTmp = k.s(); sOnes = k.s(); s5120 = k.s()
    srdX = k.s(4); srdT = k.s(4); srdS = k.s(4)
    k(f's_and_b32 {S(sX)}, s2, 7')
    k(f's_lshr_b32 {S(sQ)}, s2, 3')
    k(f's_and_b32 {S(sCQ)}, {S(sQ)}, 3')
    k(f's_lshr_b32 {S(sQ)}, {S(sQ)}, 2')
    k(f's_lshl_b32 {S(sX)}, {S(sX)}, 3')
    k(f's_add_u32 {S(sT0)}, {S(sX)}, {S(sQ)}')
    k(f's_lshl_b32 {S(sT0)}, {S(sT0)}, 5')
    k(f's_mov_b32 {S(sOnes)}, 0x3f803f80')
    k(f's_mov_b32 {S(s5120)}, 5120')
    vj = k.v(); vg = k.v(); vw = k.v(); vlr = k.v(); vb = k.v(); vt = k.v(); vt2 = k.v()
    voff = [k.v() for _ in range(5)]
    k(f'v_and_b32 {V(vj)}, 15, v0')
    k(f'v_bfe_u32 {V(vg)}, v0, 4, 2')
    k(f'v_lshrrev_b32 {V(vw)}, 6, v0')
    k(f'v_lshl_add_u32 {V(vlr)}, {V(vw)}, 3, {V(vg)}')
    k(f'v_add_u32 {V(vb)}, {S(sT0)}, {V(vlr)}')
    k(f'v_mul_u32_u24 {V(vb)}, 1280, {V(vb)}')
    k(f's_mul_i32 {S(sTmp)}, {S(sCQ)}, 20')
    k(f'v_add_u32 {V(vt)}, {S(sTmp)}, {V(vj)}')
    for kk in range(5):
        if kk: k(f'v_add_u32 {V(vt)}, 16, {V(vt)}')
        k(f'v_subrev_u32 {V(vt2)}, 80, {V(vt)}')
        k(f'v_min_u32 {V(vt2)}, {V(vt)}, {V(vt2)}')
        k(f'v_lshl_add_u32 {V(voff[kk])}, {V(vt2)}, 4, {V(vb)}')
    k('s_waitcnt lgkmcnt(0)')
    stamp(k, 2)
    mk_srd(k, srdX, sP, L * D * 2)
    xr = [[k.v(4, 4) for _ in range(5)] for _ in range(2)]
    for p in range(2):
        for kk in range(5):
            so = '0' if p == 0 else S(s5120)
            k(f'buffer_load_dwordx4 {V(xr[p][kk],4)}, {V(voff[kk])}, {S(srdX,4)}, {so} offen')
    mk_srd(k, srdT, sWS, 2 * L * D * 2, WS_UT)
    mk_srd(k, srdS, sWS, ST_BYTES, WS_ST)
    vone = k.v(4, 4); vso = k.v()
    for i in range(4): k(f'v_mov_b32 {V(vone+i)}, -1')
    k(f's_lshl_b32 {S(sTmp)}, s2, 9')
    k(f'v_lshlrev_b32 {V(vso)}, 4, v0')
    k(f'v_add_u32 {V(vso)}, {S(sTmp)}, {V(vso)}')
    k(f'v_cmp_gt_u32 vcc, 32, v0')
    sEx = k.s(2)
    k(f's_and_saveexec_b64 {S(sEx,2)}, vcc')
    Lsk = k.lbl('skipinit')
    k(f's_cbranch_execz {Lsk}')
    k(f'buffer_store_dwordx4 {V(vone,4)}, {V(vso)}, {S(srdS,4)}, 0 offen')
    k.label(Lsk)
    k(f's_mov_b64 exec, {S(sEx,2)}')
    vla = k.v()
    k(f'v_mul_u32_u24 {V(vla)}, {RS}, {V(vlr)}')
    k(f'v_lshl_add_u32 {V(vla)}, {V(vj)}, 4, {V(vla)}')
    vra = k.v(); vsa = k.v()
    k(f'v_bfe_u32 {V(vt)}, v0, 2, 2')
    k(f'v_lshl_add_u32 {V(vt)}, {V(vg)}, 3, {V(vt)}')
    k(f'v_mul_u32_u24 {V(vra)}, {RS}, {V(vt)}')
    k(f'v_and_b32 {V(vt)}, 3, v0')
    k(f'v_lshl_add_u32 {V(vra)}, {V(vt)}, 3, {V(vra)}')
    k(f'v_lshrrev_b32 {V(vt)}, 1, {V(vw)}')
    k(f'v_mul_u32_u24 {V(vt2)}, {XOFF}, {V(vt)}')
    k(f'v_add_u32 {V(vra)}, {V(vra)}, {V(vt2)}')
    k(f's_mov_b32 {S(sTmp)}, {hex(WS_XT - WS_UT)}')
    k(f'v_mul_lo_u32 {V(vsa)}, {S(sTmp)}, {V(vt)}')
    k(f'v_and_b32 {V(vt)}, 1, {V(vw)}')
    k(f'v_mul_u32_u24 {V(vt2)}, 160, {V(vt)}')
    k(f'v_add_u32 {V(vra)}, {V(vra)}, {V(vt2)}')
    k(f'v_mul_u32_u24 {V(vt)}, 80, {V(vt)}')
    k(f'v_add_u32 {V(vt)}, {V(vt)}, {V(vj)}')
    k(f's_mul_i32 {S(sTmp)}, {S(sCQ)}, 160')
    k(f'v_add_u32 {V(vt)}, {S(sTmp)}, {V(vt)}')
    k(f'v_lshl_add_u32 {V(vsa)}, {V(vt)}, 12, {V(vsa)}')
    k(f'v_lshl_add_u32 {V(vsa)}, {V(vg)}, 4, {V(vsa)}')
    k(f's_lshl_b32 {S(sTmp)}, {S(sT0)}, 1')
    k(f'v_add_u32 {V(vsa)}, {S(sTmp)}, {V(vsa)}')
    sI = [k.s() for _ in range(4)]
    for i in range(4): k(f's_mov_b32 {S(sI[i])}, {hex((i+1)*65536)}')
    vs1 = k.v(); vs2 = k.v(); vm = k.v(2, 2); vr = k.v(2, 2); va = k.v(2, 2); vu = k.v(4, 4)
    for p in range(2):
        k('s_waitcnt vmcnt(0)' if p == 1 else 's_waitcnt vmcnt(5)')
        stamp(k, 3 + p)
        k(f'v_mov_b32 {V(vs1)}, 0'); k(f'v_mov_b32 {V(vs2)}, 0')
        for kk in range(5):
            for i in range(4):
                k(f'v_dot2_f32_bf16 {V(vs1)}, {V(xr[p][kk]+i)}, {S(sOnes)}, {V(vs1)}')
                k(f'v_dot2_f32_bf16 {V(vs2)}, {V(xr[p][kk]+i)}, {V(xr[p][kk]+i)}, {V(vs2)}')
        for sh in (8, 4, 2, 1):
            k(f'v_add_f32_dpp {V(vs1)}, {V(vs1)}, {V(vs1)} row_ror:{sh} row_mask:0xf bank_mask:0xf')
            k(f'v_add_f32_dpp {V(vs2)}, {V(vs2)}, {V(vs2)} row_ror:{sh} row_mask:0xf bank_mask:0xf')
        k(f'v_mul_f32 {V(vs1)}, {fhex(1.0/D)}, {V(vs1)}')
        k(f'v_mul_f32 {V(vs2)}, {fhex(1.0/D)}, {V(vs2)}')
        k(f'v_fma_f32 {V(vs2)}, -{V(vs1)}, {V(vs1)}, {V(vs2)}')
        k(f'v_max_f32 {V(vs2)}, 0, {V(vs2)}')
        rbf(k, vm, vs1)
        rbf(k, vs2, vs2)
        k(f'v_add_f32 {V(vs2)}, {fhex(1e-5)}, {V(vs2)}')
        rbf(k, vs2, vs2)
        k(f'v_sqrt_f32 {V(vs2)}, {V(vs2)}')
        rbf(k, vs2, vs2)
        k(f'v_rcp_f32 {V(vr)}, {V(vs2)}')
        for kk in range(2):
            for i in range(4):
                src = xr[p][kk] + i
                unpack(k, va, va + 1, src)
                k(f'v_pk_add_f32 {V(va,2)}, {V(va,2)}, {V(vm,2)} op_sel_hi:[1,0] neg_lo:[0,1] neg_hi:[0,1]')
                k(f'v_cvt_pk_bf16_f32 {V(vu+i)}, {V(va)}, {V(va+1)}')
                unpack(k, va, va + 1, vu + i)
                k(f'v_pk_mul_f32 {V(va,2)}, {V(va,2)}, {V(vr,2)} op_sel_hi:[1,0]')
                k(f'v_cvt_pk_bf16_f32 {V(vu+i)}, {V(va)}, {V(va+1)}')
            if kk == 1:
                k('s_mov_b32 exec_lo, 0x000f000f'); k('s_mov_b32 exec_hi, 0x000f000f')
            off = p * 4 * RS + kk * 256
            k(f'ds_write_b128 {V(vla)}, {V(vu,4)} offset:{off}')
            k(f'ds_write_b128 {V(vla)}, {V(xr[p][kk],4)} offset:{off + XOFF}')
            if kk == 1:
                k('s_mov_b64 exec, -1')
            else:
                k('s_nop 1')
    k('s_waitcnt lgkmcnt(0)')
    k('s_barrier')
    stamp(k, 5)
    vo = [k.v(4, 4) for _ in range(5)]
    for ii in range(5):
        k(f'ds_read_b64_tr_b16 {V(vo[ii],2)}, {V(vra)} offset:{ii*32}')
        k(f'ds_read_b64_tr_b16 {V(vo[ii]+2,2)}, {V(vra)} offset:{ii*32 + 4*RS}')
    for ii in range(5):
        k(f's_waitcnt lgkmcnt({8 - 2*ii})')
        so = '0' if ii == 0 else S(sI[ii-1])
        k(f'buffer_store_dwordx4 {V(vo[ii],4)}, {V(vsa)}, {S(srdT,4)}, {so} offen')
    stamp(k, 6)
    k('s_waitcnt vmcnt(0)') if STAMPS else None
    stamp(k, 10); stamp(k, 11, True)
    dump_stamps(k, sWS, 0, 12, xr[0][0])
    k('s_endpgm')
    k.label(L_kg)
    k.ns, k.nv = ns0, nv0
    PAR = 0; PART = 2048; PS = 2560 + 64; VT = PART + 4 * PS + 64; K2 = VT + 2600
    assert K2 + 64 <= 24576
    sD = k.s(); sTmp = k.s()
    sA = k.s(8, 4); sL = k.s(2)
    k(f's_load_dwordx8 {S(sA,8)}, s[0:1], {KA["logA"]}')
    load_ptr(k, sL, 'ldt')
    k(f's_sub_u32 {S(sD)}, s2, {N_LN}')
    vj = k.v(); vg = k.v(); vw = k.v(); vt = k.v(); vt2 = k.v(); vo = k.v()
    k(f'v_and_b32 {V(vj)}, 15, v0')
    k(f'v_bfe_u32 {V(vg)}, v0, 4, 2')
    k(f'v_lshrrev_b32 {V(vw)}, 6, v0')
    k(f'v_and_b32 {V(vt)}, 127, v0')
    k(f's_lshl_b32 {S(sTmp)}, {S(sD)}, 8')
    k(f'v_lshlrev_b32 {V(vo)}, 1, {V(vt)}')
    k(f'v_add_u32 {V(vo)}, {S(sTmp)}, {V(vo)}')
    k(f's_lshl_b32 {S(sTmp)}, {S(sD)}, 1')
    vdo = k.v()
    k(f'v_mov_b32 {V(vdo)}, {S(sTmp)}')
    srd = [k.s(4) for _ in range(5)]; srdK = k.s(4)
    k('s_waitcnt lgkmcnt(0)')
    stamp(k, 2)
    for i in range(4): mk_srd(k, srd[i], sA + 2 * i, D * 128 * 2)
    mk_srd(k, srd[4], sL, D * 2)
    vp = k.v(4, 4); vdt = k.v()
    for i in range(4): k(f'buffer_load_ushort {V(vp+i)}, {V(vo)}, {S(srd[i],4)}, 0 offen')
    k(f'buffer_load_ushort {V(vdt)}, {V(vdo)}, {S(srd[4],4)}, 0 offen')
    mk_srd(k, srdK, sWS, D * KT_STRIDE, WS_KT)
    vidx = [k.v() for _ in range(9)]
    k(f'v_lshlrev_b32 {V(vt)}, 3, v0')
    k(f'v_sub_u32 {V(vt)}, 2047, {V(vt)}')
    for e in range(9):
        k(f'v_cvt_f32_i32 {V(vt2)}, {V(vt)}')
        k(f'v_cvt_pk_bf16_f32 {V(vt2)}, {V(vt2)}, {V(vt2)}')
        k(f'v_and_b32 {V(vt2)}, 0xffff, {V(vt2)}')
        k(f'v_subrev_u32 {V(vt2)}, 17024, {V(vt2)}')
        k(f'v_cmp_gt_i32 vcc, 128, {V(vt)}')
        k(f'v_cndmask_b32 {V(vt2)}, {V(vt2)}, {V(vt)}, vcc')
        k(f'v_lshlrev_b32 {V(vidx[e])}, 2, {V(vt2)}')
        k(f'v_add_u32 {V(vidx[e])}, {VT}, {V(vidx[e])}')
        if e < 8: k(f'v_add_u32 {V(vt)}, -1, {V(vt)}')
    vjf = k.v(2, 2)
    k(f'v_cvt_f32_u32 {V(vjf)}, {V(vj)}')
    stamp(k, 3)
    k('s_waitcnt vmcnt(0)')
    stamp(k, 4)
    for i in range(4): k(f'v_lshlrev_b32 {V(vp+i)}, 16, {V(vp+i)}')
    k(f'v_lshlrev_b32 {V(vdt)}, 16, {V(vdt)}')
    k(f'v_mul_f32 {V(vdt)}, {fhex(LOG2E)}, {V(vdt)}')
    k(f'v_mul_f32 {V(vp)}, {fhex(LOG2E)}, {V(vp)}')
    k(f'v_exp_f32 {V(vdt)}, {V(vdt)}')
    k(f'v_exp_f32 {V(vp)}, {V(vp)}')
    rbf(k, vdt, vdt); rbf(k, vp, vp)
    k(f'v_mul_f32 {V(vp)}, {V(vp)}, {V(vdt)}')
    k(f'v_mul_f32 {V(vp)}, {fhex(-LOG2E)}, {V(vp)}')
    k(f'v_mul_f32 {V(vp+1)}, {V(vp+1)}, {V(vdt)}')
    k(f'v_mul_f32 {V(vp+1)}, {fhex(INV2PI)}, {V(vp+1)}')
    k(f'v_add_f32 {V(vdt)}, {V(vdt)}, {V(vdt)}')
    k(f'v_mul_f32 {V(vp+2)}, {V(vp+2)}, {V(vdt)}')
    k(f'v_mul_f32 {V(vp+3)}, {V(vp+3)}, {V(vdt)}')
    k(f'v_and_b32 {V(vt)}, 127, v0')
    k(f'v_lshlrev_b32 {V(vt)}, 4, {V(vt)}')
    k(f'ds_write_b128 {V(vt)}, {V(vp,4)} offset:{PAR}')
    ve = k.v(); vc = k.v(); vs_ = k.v()
    k(f'v_mul_f32 {V(ve)}, {fhex(2048.0)}, {V(vp)}')
    k(f'v_mul_f32 {V(vc)}, {fhex(2048.0)}, {V(vp+1)}')
    k(f'v_exp_f32 {V(ve)}, {V(ve)}')
    k(f'v_fract_f32 {V(vc)}, {V(vc)}')
    k(f'v_sin_f32 {V(vs_)}, {V(vc)}')
    k(f'v_cos_f32 {V(vc)}, {V(vc)}')
    k(f'v_mul_f32 {V(vs_)}, {V(vs_)}, {V(vp+3)}')
    k(f'v_fma_f32 {V(vc)}, {V(vc)}, {V(vp+2)}, -{V(vs_)}')
    k(f'v_mul_f32 {V(vc)}, {V(vc)}, {V(ve)}')
    for sh in (8, 4, 2, 1):
        k(f'v_add_f32_dpp {V(vc)}, {V(vc)}, {V(vc)} row_ror:{sh} row_mask:0xf bank_mask:0xf')
    k(f'v_bfe_u32 {V(vt)}, v0, 4, 3')
    k(f'v_lshlrev_b32 {V(vt)}, 2, {V(vt)}')
    k(f'ds_write_b32 {V(vt)}, {V(vc)} offset:{K2}')
    k('s_waitcnt lgkmcnt(0)')
    k('s_barrier')
    stamp(k, 5)
    vpa = k.v()
    k(f'v_lshlrev_b32 {V(vpa)}, 9, {V(vw)}')
    k(f'v_lshl_add_u32 {V(vpa)}, {V(vg)}, 6, {V(vpa)}')
    par = [k.v(4, 4) for _ in range(8)]
    for m in range(8):
        ks, mm = m // 4, m % 4
        k(f'ds_read_b128 {V(par[m],4)}, {V(vpa)} offset:{PAR + (16*ks + mm)*16}')
    Eop = [k.v(4, 4) for _ in range(4)]; Gop = [k.v(4, 4) for _ in range(4)]
    acc = [k.v(4, 4) for _ in range(4)]
    tmp = [dict(E=k.v(2, 2), T=k.v(2, 2), G=k.v(2, 2), m=k.v(2, 2)) for _ in range(2)]
    def chain(m, t):
        P = par[m]; mm = m % 4
        E, T, G, M = t['E'], t['T'], t['G'], t['m']
        o = []
        o.append(f'v_pk_mul_f32 {V(T,2)}, {V(P,2)}, {V(vjf,2)} op_sel_hi:[1,0]')
        o.append(f'v_exp_f32 {V(M)}, {V(T)}')
        o.append(f'v_cos_f32 {V(E)}, {V(T+1)}')
        o.append(f'v_sin_f32 {V(E+1)}, {V(T+1)}')
        o.append(f'v_pk_mul_f32 {V(E,2)}, {V(E,2)}, {V(M,2)} op_sel_hi:[1,0]')
        for s in range(8):
            if s > 0:
                o.append(f'v_pk_mul_f32 {V(T,2)}, {V(E,2)}, {V(E,2)} op_sel_hi:[1,0]')
                o.append(f'v_pk_fma_f32 {V(E,2)}, {V(E,2)}, {V(E,2)}, {V(T,2)} op_sel:[1,1,0] op_sel_hi:[0,1,1] neg_lo:[1,0,0]')
            if s < 4:
                o.append(f'v_cvt_pk_bf16_f32 {V(Eop[s]+mm)}, {V(E)}, {V(E+1)}')
            else:
                o.append(f'v_pk_mul_f32 {V(G,2)}, {V(E,2)}, {V(P+2,2)} op_sel_hi:[1,0] neg_hi:[1,0]')
                o.append(f'v_pk_fma_f32 {V(G,2)}, {V(E,2)}, {V(P+2,2)}, {V(G,2)} op_sel:[1,1,0] op_sel_hi:[0,1,1] neg_lo:[1,0,0] neg_hi:[1,0,0]')
                o.append(f'v_cvt_pk_bf16_f32 {V(Gop[s-4]+mm)}, {V(G)}, {V(G+1)}')
        return o
    for ks in range(2):
        for pr in range(2):
            m0 = 4 * ks + 2 * pr
            k(f's_waitcnt lgkmcnt({max(0, 8 - (m0 + 2))})')
            a, b = chain(m0, tmp[0]), chain(m0 + 1, tmp[1])
            for x, y in zip(a, b):
                k(x); k(y)
        for s in range(4):
            c = '0' if ks == 0 else V(acc[s], 4)
            k(f'v_mfma_f32_16x16x32_bf16 {V(acc[s],4)}, {V(Eop[s],4)}, {V(Gop[s],4)}, {c}')
    stamp(k, 6)
    vwa = k.v()
    k(f'v_mul_u32_u24 {V(vwa)}, {PS}, {V(vw)}')
    k(f'v_lshl_add_u32 {V(vwa)}, {V(vj)}, 6, {V(vwa)}')
    k(f'v_lshl_add_u32 {V(vwa)}, {V(vg)}, 4, {V(vwa)}')
    k(f'ds_write_b128 {V(vwa)}, {V(acc[0],4)} offset:{PART}')
    k('s_mov_b32 exec_lo, 0xff00ff00'); k('s_mov_b32 exec_hi, 0xff00ff00')
    for s in range(1, 4):
        k(f'ds_write_b128 {V(vwa)}, {V(acc[s],4)} offset:{PART + 512*s}')
    k('s_mov_b64 exec, -1')
    k('s_waitcnt lgkmcnt(0)')
    k('s_barrier')
    vra = vpa; q = par[0:4]
    k(f'v_lshlrev_b32 {V(vra)}, 4, v0')
    sEx = k.s(2)
    k(f'v_cmp_gt_u32 vcc, 160, v0')
    k(f's_and_saveexec_b64 {S(sEx,2)}, vcc')
    Lalt = k.lbl('alt'); Ljoin = k.lbl('join')
    k(f's_cbranch_execz {Lalt}')
    for w in range(4): k(f'ds_read_b128 {V(q[w],4)}, {V(vra)} offset:{PART + w*PS}')
    k('s_waitcnt lgkmcnt(2)')
    k(f'v_pk_add_f32 {V(q[0],2)}, {V(q[0],2)}, {V(q[1],2)}')
    k(f'v_pk_add_f32 {V(q[0]+2,2)}, {V(q[0]+2,2)}, {V(q[1]+2,2)}')
    k('s_waitcnt lgkmcnt(0)')
    k(f'v_pk_add_f32 {V(q[2],2)}, {V(q[2],2)}, {V(q[3],2)}')
    k(f'v_pk_add_f32 {V(q[2]+2,2)}, {V(q[2]+2,2)}, {V(q[3]+2,2)}')
    k(f'v_pk_add_f32 {V(q[0],2)}, {V(q[0],2)}, {V(q[2],2)}')
    k(f'v_pk_add_f32 {V(q[0]+2,2)}, {V(q[0]+2,2)}, {V(q[2]+2,2)}')
    k(f'ds_write_b128 {V(vra)}, {V(q[0],4)} offset:{VT}')
    k(f's_branch {Ljoin}')
    k.label(Lalt)
    k(f's_mov_b64 exec, {S(sEx,2)}')
    k(f'v_mov_b32 {V(vra)}, 0')
    k(f'ds_read_b128 {V(q[0],4)}, {V(vra)} offset:{K2}')
    k(f'ds_read_b128 {V(q[1],4)}, {V(vra)} offset:{K2+16}')
    k('s_waitcnt lgkmcnt(0)')
    k(f'v_pk_add_f32 {V(q[0],2)}, {V(q[0],2)}, {V(q[1],2)}')
    k(f'v_pk_add_f32 {V(q[0]+2,2)}, {V(q[0]+2,2)}, {V(q[1]+2,2)}')
    k(f'v_pk_add_f32 {V(q[0],2)}, {V(q[0],2)}, {V(q[0]+2,2)}')
    k(f'v_add_f32 {V(q[0])}, {V(q[0])}, {V(q[0]+1)}')
    k(f'ds_write_b32 {V(vra)}, {V(q[0])} offset:{VT + 640*4}')
    k(f'ds_write_b32 {V(vra)}, {V(vra)} offset:{VT - 4}')
    k.label(Ljoin)
    k(f's_mov_b64 exec, {S(sEx,2)}')
    k('s_waitcnt lgkmcnt(0)')
    k('s_barrier')
    stamp(k, 7)
    kv = [Eop[0] + e for e in range(9)]
    for e in range(9): k(f'ds_read_b32 {V(kv[e])}, {V(vidx[e])}')
    vso = vwa
    k(f's_mul_i32 {S(sTmp)}, {S(sD)}, {KT_STRIDE}')
    k(f'v_lshlrev_b32 {V(vso)}, 4, v0')
    k(f'v_add_u32 {V(vso)}, {S(sTmp)}, {V(vso)}')
    go = par[4]; ge = par[5]; vz = par[6]; vzo = par[7]
    for i in range(4): k(f'v_mov_b32 {V(vz+i)}, 0')
    k(f'v_mul_u32_u24 {V(vzo)}, {KT_HALF}, v0')
    k(f'v_add_u32 {V(vzo)}, {S(sTmp)}, {V(vzo)}')
    k(f'v_add_u32 {V(vzo)}, 4096, {V(vzo)}')
    k('s_waitcnt lgkmcnt(0)')
    for i in range(4):
        k(f'v_cvt_pk_bf16_f32 {V(go+i)}, {V(kv[2*i])}, {V(kv[2*i+1])}')
        k(f'v_cvt_pk_bf16_f32 {V(ge+i)}, {V(kv[2*i+1])}, {V(kv[2*i+2])}')
    k(f's_mov_b32 {S(sTmp)}, {KT_HALF}')
    k(f'buffer_store_dwordx4 {V(ge,4)}, {V(vso)}, {S(srdK,4)}, 0 offen')
    k(f'buffer_store_dwordx4 {V(go,4)}, {V(vso)}, {S(srdK,4)}, {S(sTmp)} offen')
    k('s_waitcnt vmcnt(0)') if STAMPS else None
    stamp(k, 10); stamp(k, 11, True)
    dump_stamps(k, sWS, 0, 12, Gop[0])
    k(f'v_cmp_gt_u32 vcc, 2, v0')
    k(f's_and_saveexec_b64 {S(sEx,2)}, vcc')
    k(f's_cbranch_execz {L_end}')
    k(f'buffer_store_dwordx4 {V(vz,4)}, {V(vzo)}, {S(srdK,4)}, 0 offen')
    k('s_endpgm')
    k.label(L_cs)
    k.ns, k.nv = ns0, nv0
    load_ptr(k, sP, 'win')
    sC = k.s(); sTmp = k.s(); sLo = k.s(); sHi = k.s(); srdW = k.s(4); srdC = k.s(4)
    k(f's_sub_u32 {S(sC)}, s2, {N_LN + N_KG}')
    k(f's_lshl_b32 {S(sTmp)}, {S(sC)}, 7')
    vo = k.v(); vt = k.v()
    k(f'v_lshrrev_b32 {V(vo)}, 3, v0')
    k(f'v_mul_u32_u24 {V(vo)}, {F*2}, {V(vo)}')
    k(f'v_and_b32 {V(vt)}, 7, v0')
    k(f'v_lshl_add_u32 {V(vo)}, {V(vt)}, 4, {V(vo)}')
    k(f'v_add_u32 {V(vo)}, {S(sTmp)}, {V(vo)}')
    k(f's_mov_b32 {S(sLo)}, 0x00003f80')
    k(f's_mov_b32 {S(sHi)}, 0x3f800000')
    k('s_waitcnt lgkmcnt(0)')
    mk_srd(k, srdW, sP, D * F * 2)
    mk_srd(k, srdC, sWS, 8192, WS_CS)
    w = [k.v(4, 4) for _ in range(20)]
    for i in range(20):
        k(f's_mov_b32 {S(sTmp)}, {i * 32 * F * 2}')
        k(f'buffer_load_dwordx4 {V(w[i],4)}, {V(vo)}, {S(srdW,4)}, {S(sTmp)} offen')
    ac = k.v(8, 4)
    for i in range(8): k(f'v_mov_b32 {V(ac+i)}, 0')
    for i in range(20):
        k(f's_waitcnt vmcnt({19 - i})')
        for q in range(4):
            k(f'v_dot2_f32_bf16 {V(ac+2*q)}, {V(w[i]+q)}, {S(sLo)}, {V(ac+2*q)}')
            k(f'v_dot2_f32_bf16 {V(ac+2*q+1)}, {V(w[i]+q)}, {S(sHi)}, {V(ac+2*q+1)}')
    k(f'v_lshlrev_b32 {V(vt)}, 5, v0')
    k(f'ds_write_b128 {V(vt)}, {V(ac,4)}')
    k(f'ds_write_b128 {V(vt)}, {V(ac+4,4)} offset:16')
    k('s_waitcnt lgkmcnt(0)')
    k('s_barrier')
    sEx = k.s(2)
    k(f'v_cmp_gt_u32 vcc, 64, v0')
    k(f's_and_saveexec_b64 {S(sEx,2)}, vcc')
    k(f's_cbranch_execz {L_end}')
    k(f'v_lshlrev_b32 {V(vt)}, 2, v0')
    for half in range(4):
        for i in range(8): k(f'ds_read_b32 {V(w[0]+i + (8*(half&1)))}, {V(vt)} offset:{(half*8+i)*256}')
        k('s_waitcnt lgkmcnt(0)')
        for i in range(8):
            if half == 0 and i == 0: k(f'v_mov_b32 {V(ac)}, {V(w[0])}')
            else: k(f'v_add_f32 {V(ac)}, {V(ac)}, {V(w[0]+i+8*(half&1))}')
    k(f's_lshl_b32 {S(sTmp)}, {S(sC)}, 8')
    k(f'buffer_store_dword {V(ac)}, {V(vt)}, {S(srdC,4)}, {S(sTmp)} offen')
    k.label(L_end)
    k('s_endpgm')
    return k

if __name__ == '__main__':
    s = build_file([gen_k1()])
    open('t_p1.s', 'w').write(s)
```

```python
from common import *

def gen_k2():
    SLOT = 21248; CS = 4160; UOFF = 16640; RED = 3 * SLOT
    k = Kernel('p2_kernel', lds=RED + 16384, grid=256, block=256)
    k.ns = 4; k.nv = 1
    L_end = k.lbl('end')
    sWS = k.s(2); sP = k.s(2)
    k('s_cmp_ge_u32 s2, 256')
    k(f's_cbranch_scc1 {L_end}')
    stamp(k, 0, True); stamp(k, 1)
    load_ptr(k, sWS, 'ws'); load_ptr(k, sP, 'Dsk')
    sW = k.s(); sPar = k.s(); sPr = k.s(); sTmp = k.s(); sTmp2 = k.s()
    sCh = [k.s() for _ in range(3)]
    vl = k.v(); vc = k.v(); vg = k.v(); vt = k.v(); vt2 = k.v()
    k(f'v_lshrrev_b32 {V(vt)}, 6, v0')
    k(f'v_and_b32 {V(vl)}, 63, v0')
    k(f'v_readfirstlane_b32 {S(sW)}, {V(vt)}')
    k(f's_and_b32 {S(sPr)}, s2, 7')
    k(f's_lshr_b32 {S(sTmp)}, s2, 4')
    k(f's_lshl_b32 {S(sTmp)}, {S(sTmp)}, 3')
    k(f's_add_u32 {S(sPr)}, {S(sPr)}, {S(sTmp)}')
    k(f's_bfe_u32 {S(sPar)}, s2, 0x10003')
    k(f's_mul_i32 {S(sPr)}, {S(sPr)}, 5')
    k(f's_mul_i32 {S(sTmp)}, {S(sPar)}, 3')
    k(f's_add_u32 {S(sCh[0])}, {S(sPr)}, {S(sTmp)}')
    k(f's_add_u32 {S(sCh[1])}, {S(sCh[0])}, 1')
    k(f's_add_u32 {S(sCh[2])}, {S(sPr)}, 2')
    k(f'v_and_b32 {V(vc)}, 15, v0')
    k(f'v_bfe_u32 {V(vg)}, v0, 4, 2')
    veo = k.v(); vd16 = k.v()
    k(f'v_lshlrev_b32 {V(veo)}, 5, {V(vc)}')
    k(f'v_lshl_add_u32 {V(veo)}, {V(vg)}, 3, {V(veo)}')
    k(f'v_lshlrev_b32 {V(vd16)}, 4, {V(vl)}')
    sMch = k.s(); sType = k.s(); sSlot = k.s()
    k(f's_lshr_b32 {S(sSlot)}, {S(sW)}, 1')
    k(f's_add_u32 {S(sMch)}, {S(sCh[0])}, {S(sSlot)}')
    k(f's_and_b32 {S(sType)}, {S(sW)}, 1')
    TA = [7, 6, 1, 0]; TB = [5, 4, 3, 2]
    sEo = [k.s() for _ in range(5)]
    k(f's_lshl_b32 {S(sTmp)}, {S(sMch)}, 12')
    k(f's_cmp_eq_u32 {S(sType)}, 0')
    for i in range(4):
        k(f's_cselect_b32 {S(sEo[i])}, {TA[i]}, {TB[i]}')
    for i in range(4):
        k(f's_lshl_b32 {S(sEo[i])}, {S(sEo[i])}, 9')
        k(f's_add_u32 {S(sEo[i])}, {S(sEo[i])}, {S(sTmp)}')
    pa = sum(TA[i] << (4 * i) for i in range(4)); pb = sum(TB[i] << (4 * i) for i in range(4))
    k(f's_cmp_eq_u32 {S(sPar)}, 0')
    k(f's_mov_b32 {S(sTmp)}, {pa}')
    k(f's_cselect_b32 {S(sTmp)}, {S(sTmp)}, {pb}')
    k(f's_lshl_b32 {S(sTmp2)}, {S(sW)}, 2')
    k(f's_lshr_b32 {S(sTmp)}, {S(sTmp)}, {S(sTmp2)}')
    k(f's_and_b32 {S(sTmp)}, {S(sTmp)}, 15')
    k(f's_lshl_b32 {S(sTmp)}, {S(sTmp)}, 9')
    k(f's_lshl_b32 {S(sTmp2)}, {S(sCh[2])}, 12')
    k(f's_add_u32 {S(sEo[4])}, {S(sTmp)}, {S(sTmp2)}')
    srdT = k.s(4); srdK = k.s(4); srdH = k.s(4); srdD = k.s(4)
    vD = [k.v(2, 2), k.v(2, 2)]
    k(f's_lshl_b32 {S(sTmp)}, {S(sMch)}, 1')
    k(f'v_mov_b32 {V(vt)}, {S(sTmp)}')
    k(f's_lshl_b32 {S(sTmp)}, {S(sCh[2])}, 1')
    k(f'v_mov_b32 {V(vt2)}, {S(sTmp)}')
    k('s_waitcnt lgkmcnt(0)')
    stamp(k, 2)
    mk_srd(k, srdT, sWS, 2 * L * D * 2, WS_UT)
    mk_srd(k, srdD, sP, D * 2)
    mk_srd(k, srdK, sWS, D * KT_STRIDE, WS_KT)
    wf = [k.v(4, 4) for _ in range(5)]; xf = [k.v(4, 4) for _ in range(5)]
    k(f'buffer_load_ushort {V(vD[0])}, {V(vt)}, {S(srdD,4)}, 0 offen')
    k(f'buffer_load_ushort {V(vD[1])}, {V(vt2)}, {S(srdD,4)}, 0 offen')
    for i in range(5):
        k(f'buffer_load_dwordx2 {V(wf[i],2)}, {V(veo)}, {S(srdT,4)}, {S(sEo[i])} offen')
        k(f's_add_u32 {S(sTmp)}, {S(sEo[i])}, {hex(WS_XT - WS_UT)}')
        k(f'buffer_load_dwordx2 {V(xf[i],2)}, {V(veo)}, {S(srdT,4)}, {S(sTmp)} offen')
    sKs = k.s(); sM = k.s()
    k(f's_and_b32 {S(sKs)}, {S(sW)}, 1')
    k(f's_mul_i32 {S(sKs)}, {S(sKs)}, {KT_HALF}')
    k(f's_cmp_lt_u32 {S(sW)}, 2')
    k(f's_cselect_b32 {S(sTmp)}, 4, 0')
    k(f's_add_u32 {S(sKs)}, {S(sKs)}, {S(sTmp)}')
    order = [0, 1, 2]
    for sl in order:
        k(f's_lshl_b32 {S(sTmp)}, {S(sCh[sl])}, 12')
        k(f's_lshl_b32 {S(sTmp2)}, {S(sW)}, 10')
        k(f's_add_u32 {S(sTmp)}, {S(sTmp)}, {S(sTmp2)}')
        k(f's_add_u32 m0, {S(sTmp2)}, {sl*SLOT + UOFF + 512}')
        k(f'buffer_load_dwordx4 {V(vd16)}, {S(srdT,4)}, {S(sTmp)} offen lds')
        k(f's_mul_i32 {S(sTmp)}, {S(sCh[sl])}, {KT_STRIDE}')
        k(f's_add_u32 {S(sTmp)}, {S(sTmp)}, {S(sKs)}')
        k(f's_mul_i32 {S(sM)}, {S(sW)}, {CS}')
        k(f's_add_u32 m0, {S(sM)}, {sl*SLOT}')
        for c in range(4):
            k(f'buffer_load_dwordx4 {V(vd16)}, {S(srdK,4)}, {S(sTmp)} offen offset:{c*1024} lds')
    mk_srd(k, srdH, sWS, L * D * 2, WS_HT)
    vz = k.v(4, 4); vza = k.v()
    for i in range(4): k(f'v_mov_b32 {V(vz+i)}, 0')
    k(f's_min_u32 {S(sTmp)}, {S(sW)}, 2')
    k(f's_mul_i32 {S(sTmp)}, {S(sTmp)}, {SLOT}')
    k(f's_add_u32 {S(sTmp)}, {S(sTmp)}, {UOFF}')
    k(f'v_add_u32 {V(vza)}, {S(sTmp)}, {V(vd16)}')
    k(f'v_bfe_u32 {V(vt)}, {V(vl)}, 1, 2')
    k(f'v_mul_u32_u24 {V(vt)}, {SLOT}, {V(vt)}')
    k(f'v_and_b32 {V(vt2)}, 1, {V(vl)}')
    k(f'v_lshl_add_u32 {V(vt)}, {V(vt2)}, 4, {V(vt)}')
    k(f's_add_u32 {S(sTmp)}, {S(sM)}, 4096')
    k(f'v_add_u32 {V(vt)}, {S(sTmp)}, {V(vt)}')
    k(f'v_cmp_gt_u32 vcc, 32, {V(vl)}')
    k(f'v_cndmask_b32 {V(vza)}, {V(vt)}, {V(vza)}, vcc')
    k('s_mov_b32 exec_hi, 0x3f')
    k(f'ds_write_b128 {V(vza)}, {V(vz,4)}')
    k('s_mov_b64 exec, -1')
    vA0 = k.v(); vB0 = k.v(); vA = k.v(); vB = k.v()
    k(f'v_and_b32 {V(vt)}, 3, {V(vl)}')
    k(f'v_mul_u32_u24 {V(vA0)}, {CS}, {V(vt)}')
    k(f'v_lshl_add_u32 {V(vA0)}, {V(vg)}, 4, {V(vA0)}')
    k(f'v_bfe_u32 {V(vt)}, {V(vl)}, 2, 2')
    k(f'v_lshlrev_b32 {V(vt)}, 3, {V(vt)}')
    k(f'v_sub_u32 {V(vA0)}, {V(vA0)}, {V(vt)}')
    k(f'v_add_u32 {V(vA0)}, {2*2028 - 3584}, {V(vA0)}')
    k(f'v_lshlrev_b32 {V(vB0)}, 5, {V(vc)}')
    k(f'v_lshl_add_u32 {V(vB0)}, {V(vg)}, 4, {V(vB0)}')
    k(f'v_add_u32 {V(vB0)}, {UOFF + 480}, {V(vB0)}')
    k(f's_mul_i32 {S(sTmp)}, {S(sSlot)}, {SLOT}')
    k(f'v_add_u32 {V(vA)}, {S(sTmp)}, {V(vA0)}')
    k(f'v_add_u32 {V(vB)}, {S(sTmp)}, {V(vB0)}')
    stamp(k, 3)
    k('s_waitcnt vmcnt(15)')
    stamp(k, 4)
    k(f'v_lshlrev_b32 {V(vD[0])}, 16, {V(vD[0])}')
    k(f'v_lshlrev_b32 {V(vD[1])}, 16, {V(vD[1])}')
    for i in range(5):
        dd = vD[0] if i < 4 else vD[1]
        W_, X_ = wf[i], xf[i]
        unpack(k, W_ + 2, W_ + 3, W_ + 1);
        k(f'v_and_b32 {V(W_+1)}, 0xffff0000, {V(W_)}'); k(f'v_lshlrev_b32 {V(W_)}, 16, {V(W_)}')
        for h in range(2):
            k(f'v_pk_mul_f32 {V(W_+2*h,2)}, {V(W_+2*h,2)}, {V(dd,2)} op_sel_hi:[1,0]')
        for h in range(2):
            k(f'v_cvt_pk_bf16_f32 {V(W_+2*h)}, {V(W_+2*h)}, {V(W_+2*h+1)}')
        for h in range(2):
            k(f'v_and_b32 {V(W_+2*h+1)}, 0xffff0000, {V(W_+2*h)}'); k(f'v_lshlrev_b32 {V(W_+2*h)}, 16, {V(W_+2*h)}')
        unpack(k, X_ + 2, X_ + 3, X_ + 1)
        k(f'v_and_b32 {V(X_+1)}, 0xffff0000, {V(X_)}'); k(f'v_lshlrev_b32 {V(X_)}, 16, {V(X_)}')
    acc = [k.v(4, 4) for _ in range(4)]
    Af = [[k.v(4, 4) for _ in range(8)] for _ in range(2)]
    Bf = [[k.v(4, 4) for _ in range(8)] for _ in range(2)]
    sCnt = k.s(); sJob = k.s()
    k(f's_mov_b32 {S(sCnt)}, 4'); k(f's_mov_b32 {S(sJob)}, 0')
    stamp(k, 5)
    k('s_waitcnt vmcnt(0) lgkmcnt(0)')
    k('s_barrier')
    stamp(k, 6)
    L_job = k.lbl('job'); L_B = k.lbl('B'); L_post = k.lbl('post'); L_fin = k.lbl('fin')
    k.label(L_job)
    for a in acc:
        for i in range(4): k(f'v_mov_b32 {V(a+i)}, 0')
    k(f's_cmp_eq_u32 {S(sType)}, 1')
    k(f's_cbranch_scc1 {L_B}')
    def loads(st, nq, tiles):
        o = []
        seenA, seenB = set(), set()
        for (ti, q, dl) in mf_order(tiles):
            if q not in seenA:
                seenA.add(q)
                o.append(f'ds_read_b64 {V(Af[st][q],2)}, {V(vA)} offset:{512*(7-q)}')
                o.append(f'ds_read_b64 {V(Af[st][q]+2,2)}, {V(vA)} offset:{512*(7-q)+8}')
            if dl not in seenB:
                seenB.add(dl)
                o.append(f'ds_read_b128 {V(Bf[st][dl],4)}, {V(vB)} offset:{512*dl}')
        return o
    def mf_order(tiles):
        o = []
        nq = max(tiles) + 1
        for q in range(nq):
            for ti, n in enumerate(tiles):
                if q <= n: o.append((ti, q, n - q))
        return o
    def rloop(tiles):
        nq = max(tiles) + 1
        for x in loads(0, nq, tiles): k(x)
        k(f'v_subrev_u32 {V(vA)}, 64, {V(vA)}'); k(f'v_subrev_u32 {V(vB)}, 64, {V(vB)}')
        Lp = k.lbl('rl')
        k.label(Lp)
        for st in range(2):
            k('s_waitcnt lgkmcnt(0)')
            ld = loads(1 - st, nq, tiles)
            mf = mf_order(tiles)
            li = 0
            for mi, (ti, q, dl) in enumerate(mf):
                k(f'v_mfma_f32_16x16x32_bf16 {V(acc[ti],4)}, {V(Af[st][q],4)}, {V(Bf[st][dl],4)}, {V(acc[ti],4)}')
                tgt = min(len(ld), -(-len(ld) * (mi + 1) // 13))
                while li < tgt:
                    k(ld[li]); li += 1
                if mi == 14:
                    k(f'v_subrev_u32 {V(vA)}, 64, {V(vA)}'); k(f'v_subrev_u32 {V(vB)}, 64, {V(vB)}')
        k(f's_sub_u32 {S(sCnt)}, {S(sCnt)}, 1')
        k(f's_cmp_lg_u32 {S(sCnt)}, 0')
        k(f's_cbranch_scc1 {Lp}')
    rloop(TA)
    k(f's_branch {L_post}')
    k.label(L_B)
    rloop(TB)
    k.label(L_post)
    k('s_waitcnt lgkmcnt(0)')
    k(f's_cmp_eq_u32 {S(sJob)}, 1')
    k(f's_cbranch_scc1 {L_fin}')
    def epi(Y, i):
        W_, X_ = wf[i], xf[i]
        for h in range(2): k(f'v_cvt_pk_bf16_f32 {V(Y+2*h)}, {V(Y+2*h)}, {V(Y+2*h+1)}')
        for h in range(2):
            k(f'v_and_b32 {V(Y+2*h+1)}, 0xffff0000, {V(Y+2*h)}'); k(f'v_lshlrev_b32 {V(Y+2*h)}, 16, {V(Y+2*h)}')
        for h in range(2): k(f'v_pk_add_f32 {V(Y+2*h,2)}, {V(Y+2*h,2)}, {V(W_+2*h,2)}')
        for h in range(2): k(f'v_cvt_pk_bf16_f32 {V(Y+2*h)}, {V(Y+2*h)}, {V(Y+2*h+1)}')
        for h in range(2):
            k(f'v_and_b32 {V(Y+2*h+1)}, 0xffff0000, {V(Y+2*h)}'); k(f'v_lshlrev_b32 {V(Y+2*h)}, 16, {V(Y+2*h)}')
        for h in range(2): k(f'v_pk_add_f32 {V(Y+2*h,2)}, {V(Y+2*h,2)}, {V(X_+2*h,2)}')
        for h in range(2): k(f'v_cvt_pk_bf16_f32 {V(W_+h)}, {V(Y+2*h)}, {V(Y+2*h+1)}')
        k(f'buffer_store_dwordx2 {V(W_,2)}, {V(veo)}, {S(srdH,4)}, {S(sEo[i])} offen')
    stamp(k, 7)
    for i in range(4): epi(acc[i], i)
    stamp(k, 8)
    k(f's_mov_b32 {S(sJob)}, 1'); k(f's_mov_b32 {S(sCnt)}, 1'); k(f's_mov_b32 {S(sType)}, {S(sPar)}')
    k(f's_lshl_b32 {S(sTmp)}, {S(sW)}, 7')
    k(f's_sub_u32 {S(sTmp)}, {2*SLOT}, {S(sTmp)}')
    k(f'v_add_u32 {V(vA)}, {S(sTmp)}, {V(vA0)}')
    k(f'v_add_u32 {V(vB)}, {S(sTmp)}, {V(vB0)}')
    k(f's_branch {L_job}')
    k.label(L_fin)
    stamp(k, 9)
    k(f's_lshl_b32 {S(sTmp)}, {S(sW)}, 10')
    k(f's_add_u32 {S(sTmp)}, {S(sTmp)}, {RED}')
    k(f'v_add_u32 {V(vt)}, {S(sTmp)}, {V(vd16)}')
    for i in range(4): k(f'ds_write_b128 {V(vt)}, {V(acc[i],4)} offset:{i*4096}')
    k(f's_lshl_b32 {S(sTmp)}, {S(sW)}, 12')
    k(f'v_add_u32 {V(vt2)}, {S(sTmp)}, {V(vd16)}')
    k('s_waitcnt lgkmcnt(0)')
    k('s_barrier')
    k(f's_mov_b32 {S(sTmp)}, {RED}')
    k(f'v_add_u32 {V(vt2)}, {S(sTmp)}, {V(vt2)}')
    for i in range(4): k(f'ds_read_b128 {V(Af[0][i],4)}, {V(vt2)} offset:{i*1024}')
    k('s_waitcnt lgkmcnt(0)')
    q = Af[0]
    for h in range(2):
        k(f'v_pk_add_f32 {V(q[0]+2*h,2)}, {V(q[0]+2*h,2)}, {V(q[1]+2*h,2)}')
        k(f'v_pk_add_f32 {V(q[2]+2*h,2)}, {V(q[2]+2*h,2)}, {V(q[3]+2*h,2)}')
    for h in range(2):
        k(f'v_pk_add_f32 {V(q[0]+2*h,2)}, {V(q[0]+2*h,2)}, {V(q[2]+2*h,2)}')
    epi(q[0], 4)
    k('s_waitcnt vmcnt(0)') if STAMPS else None
    stamp(k, 10); stamp(k, 11, True)
    dump_stamps(k, sWS, 1, 12, Af[1][0])
    k.label(L_end)
    k('s_endpgm')
    return k

if __name__ == '__main__':
    from k1 import gen_k1
    s = build_file([gen_k1(), gen_k2()])
    open('t_p2.s', 'w').write(s)
```

```python
from common import *
from k5 import tile_ids

GELU_C0 = -2.0 * math.sqrt(2.0 / math.pi) * LOG2E
GELU_C1 = GELU_C0 * 0.044715

def ln_finalize(k, vs1, vs2, vm, vr, n):
    k(f'v_mul_f32 {V(vs1)}, {fhex(1.0/n)}, {V(vs1)}')
    k(f'v_mul_f32 {V(vs2)}, {fhex(1.0/n)}, {V(vs2)}')
    k(f'v_fma_f32 {V(vs2)}, -{V(vs1)}, {V(vs1)}, {V(vs2)}')
    k(f'v_max_f32 {V(vs2)}, 0, {V(vs2)}')
    rbf(k, vm, vs1)
    rbf(k, vs2, vs2)
    k(f'v_add_f32 {V(vs2)}, {fhex(1e-5)}, {V(vs2)}')
    rbf(k, vs2, vs2)
    k(f'v_sqrt_f32 {V(vs2)}, {V(vs2)}')
    rbf(k, vs2, vs2)
    k(f'v_rcp_f32 {V(vr)}, {V(vs2)}')

def gen_k3():
    R = 5; NST = 20; ASZ = 14336; RING = 81920; STAT = RING + R * ASZ; FIN = STAT + 1024
    k = Kernel('p3_kernel', lds=FIN + 512, grid=256, block=512)
    k.ns = 4; k.nv = 1
    L_end = k.lbl('end')
    sWS = k.s(2); sP = k.s(2)
    k('s_cmp_ge_u32 s2, 256')
    k(f's_cbranch_scc1 {L_end}')
    stamp(k, 0, True); stamp(k, 1)
    load_ptr(k, sWS, 'ws'); load_ptr(k, sP, 'win')
    sW = k.s(); sTb = k.s(); sFb = k.s(); sTmp = k.s(); sTmp2 = k.s()
    vl = k.v(); vt = k.v(); vt2 = k.v()
    k(f'v_lshrrev_b32 {V(vt)}, 6, v0')
    k(f'v_and_b32 {V(vl)}, 63, v0')
    k(f'v_readfirstlane_b32 {S(sW)}, {V(vt)}')
    tile_ids(k, sTb, sFb, sTmp)
    L_cons = k.lbl('cons')
    k(f's_cmp_lt_u32 {S(sW)}, 4')
    k(f's_cbranch_scc1 {L_cons}')
    ns0, nv0 = k.ns, k.nv
    srdA = k.s(4); srdB = k.s(4); srdS = k.s(4); sAo = k.s(); sBo = k.s()
    vA = [k.v() for _ in range(4)]; vB = [k.v() for _ in range(4)]
    nA = [4, 4, 4, 2]; cB = [[0], [1], [2, 3], [4, 5, 6, 7]]
    k(f's_sub_u32 {S(sTmp)}, {S(sW)}, 4')
    k(f's_lshl_b32 {S(sTmp)}, {S(sTmp)}, 8')
    for i in range(4):
        k(f'v_add_u32 {V(vt)}, {S(sTmp)}, {V(vl)}')
        if i: k(f'v_add_u32 {V(vt)}, {64*i}, {V(vt)}')
        k(f'v_mul_u32_u24 {V(vt2)}, 4682, {V(vt)}')
        k(f'v_lshrrev_b32 {V(vt2)}, 16, {V(vt2)}')
        k(f'v_mul_u32_u24 {V(vA[i])}, {F*2 - 224}, {V(vt2)}')
        k(f'v_lshl_add_u32 {V(vA[i])}, {V(vt)}, 4, {V(vA[i])}')
        if i: k(f'v_subrev_u32 {V(vA[i])}, {i*1024}, {V(vA[i])}')
    k(f'v_bfe_u32 {V(vt)}, {V(vl)}, 3, 2')
    k(f'v_lshlrev_b32 {V(vt)}, 1, {V(vt)}')
    k(f'v_lshrrev_b32 {V(vt2)}, 5, {V(vl)}')
    k(f'v_add_u32 {V(vt)}, {V(vt)}, {V(vt2)}')
    k(f'v_lshlrev_b32 {V(vt)}, 12, {V(vt)}')
    k(f'v_bfe_u32 {V(vt2)}, {V(vl)}, 4, 1')
    k(f'v_lshlrev_b32 {V(vt2)}, 2, {V(vt2)}')
    k(f'v_xor_b32 {V(vt2)}, {V(vt2)}, {V(vl)}')
    k(f'v_and_b32 {V(vt2)}, 7, {V(vt2)}')
    k(f'v_lshl_add_u32 {V(vt)}, {V(vt2)}, 4, {V(vt)}')
    k(f's_mul_i32 {S(sAo)}, {S(sFb)}, 224')
    k(f's_add_u32 {S(sAo)}, {S(sAo)}, {FH*2}')
    k(f's_lshl_b32 {S(sBo)}, {S(sTb)}, 7')
    k('s_waitcnt lgkmcnt(0)')
    mk_srd(k, srdA, sP, D * F * 2)
    mk_srd(k, srdB, sWS, L * D * 2, WS_HT)
    mk_srd(k, srdS, sWS, ST_BYTES, WS_ST)
    Lw = [k.lbl(f'ld{w}') for w in range(4)]
    for w in range(1, 4):
        k(f's_cmp_eq_u32 {S(sW)}, {4 + w}')
        k(f's_cbranch_scc1 {Lw[w]}')
    for w in range(4):
        k.label(Lw[w])
        for i, c in enumerate(cB[w]):
            add = c * 8 * 4096 - i * 1024
            if add: k(f'v_add_u32 {V(vB[i])}, {add}, {V(vt)}')
            else: k(f'v_mov_b32 {V(vB[i])}, {V(vt)}')
        def issue(s):
            n = 0
            if s < 10:
                k(f's_mov_b32 m0, {s * 8192 + cB[w][0] * 1024}')
                for i in range(len(cB[w])):
                    k(f'buffer_load_dwordx4 {V(vB[i])}, {S(srdB,4)}, {S(sBo)} offen offset:{i*1024} lds'); n += 1
                k(f's_add_u32 {S(sBo)}, {S(sBo)}, {64 * 4096}')
            k(f's_mov_b32 m0, {RING + (s % R) * ASZ + w * 4096}')
            for i in range(nA[w]):
                k(f'buffer_load_dwordx4 {V(vA[i])}, {S(srdA,4)}, {S(sAo)} offen offset:{i*1024} lds'); n += 1
            if s == 9: k(f's_sub_u32 {S(sAo)}, {S(sAo)}, {9 * 64 * F * 2 + FH * 2}')
            else: k(f's_add_u32 {S(sAo)}, {S(sAo)}, {64 * F * 2}')
            return n
        issued = [issue(s) for s in range(R - 1)]
        for s in range(NST):
            k(f's_waitcnt vmcnt({min(63, sum(issued[s + 1:]))})')
            k('s_barrier')
            if s + R - 1 < NST: issued.append(issue(s + R - 1))
            if w == 3 and s == 11:
                p0 = k.v(2, 2); p1 = k.v(2, 2); vso = k.v()
                k(f'v_lshlrev_b32 {V(vso)}, 3, {V(vl)}')
                k(f'v_add_u32 {V(vt)}, {STAT}, {V(vso)}')
                k(f'ds_read_b64 {V(p0,2)}, {V(vt)}')
                k(f'ds_read_b64 {V(p1,2)}, {V(vt)} offset:512')
                k(f's_lshl_b32 {S(sTmp)}, {S(sTb)}, 12')
                k(f's_lshl_b32 {S(sTmp2)}, {S(sFb)}, 9')
                k(f's_add_u32 {S(sTmp2)}, {S(sTmp2)}, {S(sTmp)}')
                k('s_waitcnt lgkmcnt(0)')
                k(f'v_pk_add_f32 {V(p0,2)}, {V(p0,2)}, {V(p1,2)}')
                k(f'v_and_b32 {V(p0+1)}, 0x7fffffff, {V(p0+1)}')
                k(f'buffer_store_dwordx2 {V(p0,2)}, {V(vso)}, {S(srdS,4)}, {S(sTmp2)} offen sc0 sc1')
                issued[-1] += 1
        if w == 3:
            g = [k.v(2, 2) for _ in range(8)]; sIt = k.s()
            k(f's_mov_b32 {S(sIt)}, 0')
            Lpoll = k.lbl('poll'); Lok = k.lbl('ok')
            k.label(Lpoll)
            for i in range(8):
                k(f'buffer_load_dwordx2 {V(g[i],2)}, {V(vso)}, {S(srdS,4)}, {S(sTmp)} offen offset:{i*512} sc0 sc1')
            k('s_waitcnt vmcnt(0)')
            k(f'v_or3_b32 {V(vt)}, {V(g[0]+1)}, {V(g[1]+1)}, {V(g[2]+1)}')
            k(f'v_or3_b32 {V(vt)}, {V(vt)}, {V(g[3]+1)}, {V(g[4]+1)}')
            k(f'v_or3_b32 {V(vt)}, {V(vt)}, {V(g[5]+1)}, {V(g[6]+1)}')
            k(f'v_or_b32 {V(vt)}, {V(vt)}, {V(g[7]+1)}')
            k(f'v_cmp_gt_i32 vcc, 0, {V(vt)}')
            k(f's_cbranch_vccz {Lok}')
            k(f's_add_u32 {S(sIt)}, {S(sIt)}, 1')
            k('s_sleep 2')
            k(f's_cmp_lt_u32 {S(sIt)}, 0x40000')
            k(f's_cbranch_scc1 {Lpoll}')
            k.label(Lok)
            for a, b in ((0, 1), (2, 3), (4, 5), (6, 7), (0, 2), (4, 6), (0, 4)):
                k(f'v_pk_add_f32 {V(g[a],2)}, {V(g[a],2)}, {V(g[b],2)}')
            ln_finalize(k, g[0], g[0] + 1, g[1], g[1] + 1, FH)
            k(f'v_add_u32 {V(vt)}, {FIN}, {V(vso)}')
            k(f'ds_write_b64 {V(vt)}, {V(g[1],2)}')
            k('s_waitcnt lgkmcnt(0)')
            k('s_barrier')
        if STAMPS:
            stamp(k, 10); stamp(k, 11, True); dump_stamps(k, sWS, 2, 12, vt)
        k('s_endpgm')
    k.label(L_cons)
    k.ns, k.nv = ns0, nv0
    sTc = k.s(); sFc = k.s(); sSl = k.s(); sCnt = k.s(); sOnes = k.s(); sNp = k.s(); sC1 = k.s(2); sCs = k.s(); sBs = k.s()
    srdC = k.s(4); srdZ1 = k.s(4); srdZ2 = k.s(4)
    k(f's_and_b32 {S(sTc)}, {S(sW)}, 1')
    k(f's_lshr_b32 {S(sFc)}, {S(sW)}, 1')
    k(f's_mov_b32 {S(sOnes)}, 0x3f803f80')
    k(f's_mov_b32 {S(sC1)}, {fhex(GELU_C1)}')
    k(f's_mov_b32 {S(sC1+1)}, {fhex(GELU_C1)}')
    k(f's_cmp_eq_u32 {S(sFb)}, 7')
    k(f's_cselect_b32 {S(sNp)}, 1, 3')
    k(f's_cmp_eq_u32 {S(sFc)}, 0')
    k(f's_cselect_b32 {S(sNp)}, 4, {S(sNp)}')
    vhi = k.v(); vn = k.v(); vr_ = k.v(); vG = k.v(); vcc_ = k.v()
    vA0 = k.v(); vAa = k.v(); vBa = k.v()
    k(f'v_lshrrev_b32 {V(vhi)}, 5, {V(vl)}')
    k(f'v_and_b32 {V(vn)}, 31, {V(vl)}')
    k(f'v_bfe_u32 {V(vr_)}, {V(vl)}, 2, 2')
    k(f'v_bfe_u32 {V(vG)}, {V(vl)}, 4, 1')
    k(f'v_and_b32 {V(vcc_)}, 3, {V(vl)}')
    k(f'v_lshlrev_b32 {V(vt)}, 2, {V(vhi)}')
    k(f'v_add_u32 {V(vt)}, {V(vt)}, {V(vr_)}')
    k(f'v_mul_u32_u24 {V(vA0)}, 448, {V(vt)}')
    k(f'v_lshl_add_u32 {V(vA0)}, {V(vG)}, 5, {V(vA0)}')
    k(f'v_lshl_add_u32 {V(vA0)}, {V(vcc_)}, 3, {V(vA0)}')
    k(f's_lshl_b32 {S(sTmp)}, {S(sFc)}, 7')
    k(f's_add_u32 {S(sTmp)}, {S(sTmp)}, {RING}')
    k(f'v_add_u32 {V(vA0)}, {S(sTmp)}, {V(vA0)}')
    k(f'v_lshl_add_u32 {V(vBa)}, {V(vhi)}, 3, {V(vr_)}')
    k(f'v_lshlrev_b32 {V(vBa)}, 7, {V(vBa)}')
    k(f'v_lshrrev_b32 {V(vt)}, 1, {V(vcc_)}')
    k(f'v_lshl_add_u32 {V(vt)}, {V(vG)}, 1, {V(vt)}')
    k(f's_lshl_b32 {S(sTmp)}, {S(sTc)}, 2')
    k(f'v_add_u32 {V(vt)}, {S(sTmp)}, {V(vt)}')
    k(f'v_lshrrev_b32 {V(vt2)}, 1, {V(vr_)}')
    k(f'v_lshlrev_b32 {V(vt2)}, 2, {V(vt2)}')
    k(f'v_xor_b32 {V(vt)}, {V(vt)}, {V(vt2)}')
    k(f'v_lshl_add_u32 {V(vBa)}, {V(vt)}, 4, {V(vBa)}')
    k(f'v_and_b32 {V(vt)}, 1, {V(vcc_)}')
    k(f'v_lshl_add_u32 {V(vBa)}, {V(vt)}, 3, {V(vBa)}')
    vB0 = k.v()
    k(f'v_mov_b32 {V(vB0)}, {V(vBa)}')
    acc = [[k.v(16, 4) for _ in range(2)] for _ in range(2)]
    Af = [[[k.v(4, 4) for _ in range(2)] for _ in range(4)] for _ in range(2)]
    Bf = [[k.v(4, 4) for _ in range(4)] for _ in range(2)]
    cs = k.v(32, 4)
    vs1 = k.v(); vs2 = k.v(); vm = k.v(2, 2); vr = k.v(2, 2); vc0 = k.v(2, 2); vone = k.v(2, 2)
    vco = k.v(); vzo = k.v(); vq = [k.v() for _ in range(4)]
    for ph in range(2):
        for a in acc[ph]:
            for i in range(16): k(f'v_mov_b32 {V(a+i)}, 0')
    k(f'v_mov_b32 {V(vs1)}, 0'); k(f'v_mov_b32 {V(vs2)}, 0')
    k(f'v_mov_b32 {V(vc0)}, {fhex(GELU_C0)}'); k(f'v_mov_b32 {V(vone)}, 1.0')
    k(f'v_lshlrev_b32 {V(vco)}, 4, {V(vhi)}')
    k(f's_mul_i32 {S(sCs)}, {S(sFb)}, 448')
    k(f's_lshl_b32 {S(sTmp)}, {S(sFc)}, 8')
    k(f's_add_u32 {S(sCs)}, {S(sCs)}, {S(sTmp)}')
    k(f'v_lshlrev_b32 {V(vzo)}, 4, {V(vl)}')
    k(f's_lshl_b32 {S(sTmp)}, {S(sTb)}, 3')
    k(f's_add_u32 {S(sTmp)}, {S(sTmp)}, {S(sFb)}')
    k(f's_lshl_b32 {S(sTmp)}, {S(sTmp)}, 2')
    k(f's_add_u32 {S(sTmp)}, {S(sTmp)}, {S(sW)}')
    k(f's_lshl_b32 {S(sTmp)}, {S(sTmp)}, 12')
    k(f'v_add_u32 {V(vzo)}, {S(sTmp)}, {V(vzo)}')
    k(f's_lshl_b32 {S(sTmp)}, {S(sFb)}, 5')
    k(f's_add_u32 {S(sTmp)}, {S(sTmp)}, {S(sTb)}')
    k(f's_mul_i32 {S(sTmp)}, {S(sTmp)}, {ASZ}')
    k(f's_lshl_b32 {S(sTmp2)}, {S(sFc)}, 13')
    k(f's_add_u32 {S(sTmp)}, {S(sTmp)}, {S(sTmp2)}')
    k(f's_lshl_b32 {S(sTmp2)}, {S(sTc)}, 8')
    k(f's_add_u32 {S(sTmp)}, {S(sTmp)}, {S(sTmp2)}')
    k(f'v_lshlrev_b32 {V(vt)}, 9, {V(vhi)}')
    k(f'v_lshl_add_u32 {V(vt)}, {V(vcc_)}, 3, {V(vt)}')
    k(f'v_add_u32 {V(vt)}, {S(sTmp)}, {V(vt)}')
    k(f'v_lshrrev_b32 {V(vt2)}, 2, {V(vn)}')
    k(f'v_xor_b32 {V(vt2)}, {V(vt2)}, {V(vhi)}')
    for q in range(4):
        k(f'v_xor_b32 {V(vq[q])}, {2*q}, {V(vt2)}')
        k(f'v_lshl_add_u32 {V(vq[q])}, {V(vq[q])}, 5, {V(vt)}')
    k('s_waitcnt lgkmcnt(0)')
    stamp(k, 2)
    mk_srd(k, srdC, sWS, 8192, WS_CS)
    mk_srd(k, srdZ1, sWS, 0x400000, WS_Z1)
    mk_srd(k, srdZ2, sWS, 8 * 32 * ASZ, WS_Z2)
    k(f's_add_u32 {S(sTmp)}, {S(sCs)}, {FH * 4}')
    def load_cs(soff):
        for i in range(8):
            k(f'buffer_load_dwordx4 {V(cs+4*i,4)}, {V(vco)}, {S(srdC,4)}, {S(soff)} offen offset:{i*32}')
    load_cs(sTmp)
    k(f's_mov_b32 {S(sSl)}, 0'); k(f's_mov_b32 {S(sBs)}, 0')
    def reads(st):
        o = []
        for kk in range(4):
            for h in range(2):
                o.append(f'ds_read_b64_tr_b16 {V(Bf[st][kk]+2*h,2)}, {V(vBa)} offset:{kk*2048 + h*512}')
            for mi in range(2):
                for h in range(2):
                    o.append(f'ds_read_b64_tr_b16 {V(Af[st][kk][mi]+2*h,2)}, {V(vAa)} offset:{kk*3584 + h*224 + mi*64}')
        return o
    def mfmas(st, ph):
        o = []
        for kk in range(4):
            for mi in range(2):
                ex = []
                if ph == 0:
                    for i in range(2):
                        b = Bf[st][kk] + 2 * mi + i
                        ex.append(f'v_dot2_f32_bf16 {V(vs1)}, {V(b)}, {S(sOnes)}, {V(vs1)}')
                        ex.append(f'v_dot2_f32_bf16 {V(vs2)}, {V(b)}, {V(b)}, {V(vs2)}')
                o.append((f'v_mfma_f32_32x32x16_bf16 {V(acc[ph][mi],16)}, {V(Af[st][kk][mi],4)}, {V(Bf[st][kk],4)}, {V(acc[ph][mi],16)}', ex))
        return o
    def addr_update():
        k(f'v_add_u32 {V(vAa)}, {S(sSl)}, {V(vA0)}')
        k(f'v_add_u32 {V(vBa)}, {S(sBs)}, {V(vB0)}')
        k(f's_add_u32 {S(sSl)}, {S(sSl)}, {ASZ}')
        k(f's_cmp_eq_u32 {S(sSl)}, {R * ASZ}')
        k(f's_cselect_b32 {S(sSl)}, 0, {S(sSl)}')
        k(f's_add_u32 {S(sBs)}, {S(sBs)}, 8192')
        k(f's_cmp_eq_u32 {S(sBs)}, {RING}')
        k(f's_cselect_b32 {S(sBs)}, 0, {S(sBs)}')
    def stage(st, ph_prev):
        k('s_barrier')
        rd = reads(st); mf = mfmas(1 - st, ph_prev) if ph_prev is not None else []
        ri = 0
        for mi_, (m, ex) in enumerate(mf):
            tgt = min(len(rd), 4 * (mi_ + 1))
            while ri < tgt: k(rd[ri]); ri += 1
            k(m)
            for x in ex: k(x)
        while ri < len(rd): k(rd[ri]); ri += 1
        addr_update()
        k('s_waitcnt lgkmcnt(0)')
    def loop(n, ph):
        k(f's_mov_b32 {S(sCnt)}, {n}')
        Lp = k.lbl('clp'); k.label(Lp)
        stage(1, ph); stage(0, ph)
        k(f's_sub_u32 {S(sCnt)}, {S(sCnt)}, 1')
        k(f's_cmp_lg_u32 {S(sCnt)}, 0')
        k(f's_cbranch_scc1 {Lp}')
    tA = k.v(2, 2); tB = k.v(2, 2); tC = k.v(2, 2); tD = k.v(2, 2)
    def gelu_pair(a, c, dst, T):
        z, e = T
        return [
            f'v_pk_fma_f32 {V(a,2)}, {V(c,2)}, {V(vm,2)}, {V(a,2)} op_sel_hi:[1,0,1] neg_lo:[1,0,0] neg_hi:[1,0,0]',
            f'v_pk_mul_f32 {V(a,2)}, {V(a,2)}, {V(vr,2)} op_sel_hi:[1,0]',
            f'v_cvt_pk_bf16_f32 {V(z)}, {V(a)}, {V(a+1)}',
            f'v_and_b32 {V(z+1)}, 0xffff0000, {V(z)}',
            f'v_lshlrev_b32 {V(z)}, 16, {V(z)}',
            f'v_pk_mul_f32 {V(e,2)}, {V(z,2)}, {V(z,2)}',
            f'v_pk_fma_f32 {V(e,2)}, {V(e,2)}, {S(sC1,2)}, {V(vc0,2)} op_sel_hi:[1,1,0]',
            f'v_pk_mul_f32 {V(e,2)}, {V(e,2)}, {V(z,2)}',
            f'v_exp_f32 {V(e)}, {V(e)}',
            f'v_exp_f32 {V(e+1)}, {V(e+1)}',
            f'v_pk_add_f32 {V(e,2)}, {V(e,2)}, {V(vone,2)} op_sel_hi:[1,0]',
            f'v_rcp_f32 {V(e)}, {V(e)}',
            f'v_rcp_f32 {V(e+1)}, {V(e+1)}',
            f'v_pk_mul_f32 {V(z,2)}, {V(z,2)}, {V(e,2)}',
            f'v_cvt_pk_bf16_f32 {V(dst)}, {V(z)}, {V(z+1)}',
        ]
    def half_combine(v):
        k(f'v_mov_b32 {V(vt)}, {V(v)}')
        k(f'v_permlane32_swap_b32 {V(v)}, {V(vt)}')
        k(f'v_add_f32 {V(v)}, {V(v)}, {V(vt)}')
    addr_update()
    stage(0, None)
    stamp(k, 3)
    loop(5, 0)
    stamp(k, 4)
    half_combine(vs1); half_combine(vs2)
    ln_finalize(k, vs1, vs2, vm, vr, D)
    k('s_waitcnt vmcnt(0)')
    k(f'v_mov_b32 {V(vs1)}, 0'); k(f'v_mov_b32 {V(vs2)}, 0')
    Lz = k.lbl('z2done')
    for j in range(4):
        if j:
            k(f's_cmp_le_u32 {S(sNp)}, {j}'); k(f's_cbranch_scc1 {Lz}')
        a0 = acc[0][j >> 1] + 8 * (j & 1)
        for dp in range(2):
            x = gelu_pair(a0 + 4*dp, cs + 8*j + 4*dp, a0 + 4*dp, (tA, tB))
            y = gelu_pair(a0 + 4*dp + 2, cs + 8*j + 4*dp + 2, a0 + 4*dp + 1, (tC, tD))
            for p_, q_ in zip(x, y): k(p_); k(q_)
            for i in range(2):
                k(f'v_dot2_f32_bf16 {V(vs1)}, {V(a0+4*dp+i)}, {S(sOnes)}, {V(vs1)}')
                k(f'v_dot2_f32_bf16 {V(vs2)}, {V(a0+4*dp+i)}, {V(a0+4*dp+i)}, {V(vs2)}')
    k.label(Lz)
    load_cs(sCs)
    vst = k.v(2, 2)
    half_combine(vs1); half_combine(vs2)
    k(f'v_mov_b32 {V(vst)}, {V(vs1)}'); k(f'v_mov_b32 {V(vst+1)}, {V(vs2)}')
    k(f's_lshl_b32 {S(sTmp)}, {S(sFc)}, 9')
    k(f's_lshl_b32 {S(sTmp2)}, {S(sTc)}, 8')
    k(f's_add_u32 {S(sTmp)}, {S(sTmp)}, {S(sTmp2)}')
    k(f's_add_u32 {S(sTmp)}, {S(sTmp)}, {STAT}')
    k(f'v_lshlrev_b32 {V(vt2)}, 3, {V(vn)}')
    k(f'v_add_u32 {V(vt)}, {S(sTmp)}, {V(vt2)}')
    k(f'ds_write_b64 {V(vt)}, {V(vst,2)}')
    k(f's_add_u32 {S(sTmp2)}, {S(sTmp2)}, {FIN}')
    vfa = k.v()
    k(f'v_add_u32 {V(vfa)}, {S(sTmp2)}, {V(vt2)}')
    k('s_waitcnt lgkmcnt(0)')
    stamp(k, 5)
    loop(4, 1)
    stage(1, 1)
    for m, _ in mfmas(1, 1): k(m)
    stamp(k, 6)
    k('s_waitcnt vmcnt(0)')
    Lz1 = k.lbl('z1done')
    for j in range(4):
        if j:
            k(f's_cmp_le_u32 {S(sNp)}, {j}'); k(f's_cbranch_scc1 {Lz1}')
        a0 = acc[1][j >> 1] + 8 * (j & 1)
        o = Af[0][j][0]
        for dp in range(2):
            x = gelu_pair(a0 + 4*dp, cs + 8*j + 4*dp, o + 2*dp, (tA, tB))
            y = gelu_pair(a0 + 4*dp + 2, cs + 8*j + 4*dp + 2, o + 2*dp + 1, (tC, tD))
            for p_, q_ in zip(x, y): k(p_); k(q_)
        k(f'buffer_store_dwordx4 {V(o,4)}, {V(vzo)}, {S(srdZ1,4)}, 0 offen offset:{j*1024}')
    k.label(Lz1)
    stamp(k, 7)
    k('s_barrier')
    stamp(k, 8)
    k(f'ds_read_b64 {V(vm,2)}, {V(vfa)}')
    k(f's_mov_b32 {S(sTmp)}, 4096')
    k('s_waitcnt lgkmcnt(0)')
    Lz2 = k.lbl('z2st')
    for j in range(4):
        if j:
            k(f's_cmp_le_u32 {S(sNp)}, {j}'); k(f's_cbranch_scc1 {Lz2}')
        a0 = acc[0][j >> 1] + 8 * (j & 1)
        for dp in range(2):
            for i in range(2):
                src = a0 + 4*dp + i; T = (tA, tB)[i]
                unpack(k, T, T + 1, src)
                k(f'v_pk_add_f32 {V(T,2)}, {V(T,2)}, {V(vm,2)} op_sel_hi:[1,0] neg_lo:[0,1] neg_hi:[0,1]')
                k(f'v_cvt_pk_bf16_f32 {V(T)}, {V(T)}, {V(T+1)}')
                k(f'v_and_b32 {V(T+1)}, 0xffff0000, {V(T)}'); k(f'v_lshlrev_b32 {V(T)}, 16, {V(T)}')
                k(f'v_pk_mul_f32 {V(T,2)}, {V(T,2)}, {V(vm,2)} op_sel:[0,1] op_sel_hi:[1,1]')
                k(f'v_cvt_pk_bf16_f32 {V(src)}, {V(T)}, {V(T+1)}')
            q = 2 * (j & 1) + dp; mi = j >> 1
            so = '0' if mi == 0 else S(sTmp)
            k(f'buffer_store_dwordx2 {V(a0+4*dp,2)}, {V(vq[q])}, {S(srdZ2,4)}, {so} offen offset:{q*1024}')
    k.label(Lz2)
    if STAMPS:
        stamp(k, 9); k('s_waitcnt vmcnt(0)'); stamp(k, 10); stamp(k, 11, True); dump_stamps(k, sWS, 2, 12, vt)
    k.label(L_end)
    k('s_endpgm')
    return k
```

```python
from common import *

def gen_k4():
    R = 6; NST = 32; ASZ = 14336; BSZ = 8192; SLOT = ASZ + BSZ
    k = Kernel('p4_kernel', lds=R * SLOT, grid=256, block=512)
    k.ns = 4; k.nv = 1
    L_end = k.lbl('end')
    sWS = k.s(2); sP = k.s(4, 4)
    k('s_cmp_ge_u32 s2, 256')
    k(f's_cbranch_scc1 {L_end}')
    stamp(k, 0, True); stamp(k, 1)
    load_ptr(k, sWS, 'ws')
    k(f's_load_dwordx4 {S(sP,4)}, s[0:1], {KA["wsp"]}')
    sW = k.s(); sTb = k.s(); sFb = k.s(); sTmp = k.s(); sTmp2 = k.s()
    vl = k.v(); vt = k.v(); vt2 = k.v()
    k(f'v_lshrrev_b32 {V(vt)}, 6, v0')
    k(f'v_and_b32 {V(vl)}, 63, v0')
    k(f'v_readfirstlane_b32 {S(sW)}, {V(vt)}')
    k(f's_bfe_u32 {S(sTb)}, s2, 0x20001')
    k(f's_lshl_b32 {S(sTb)}, {S(sTb)}, 3')
    k(f's_lshr_b32 {S(sTmp)}, s2, 5')
    k(f's_add_u32 {S(sTb)}, {S(sTb)}, {S(sTmp)}')
    k(f's_and_b32 {S(sFb)}, s2, 1')
    k(f's_lshl_b32 {S(sFb)}, {S(sFb)}, 2')
    k(f's_bfe_u32 {S(sTmp)}, s2, 0x20003')
    k(f's_add_u32 {S(sFb)}, {S(sFb)}, {S(sTmp)}')
    L_cons = k.lbl('cons')
    k(f's_cmp_lt_u32 {S(sW)}, 4')
    k(f's_cbranch_scc1 {L_cons}')
    ns0, nv0 = k.ns, k.nv
    srdA = k.s(4); srdB = k.s(4); sAo = k.s(); sBo = k.s(); sSl = k.s(); sCnt = k.s()
    vA = k.v(); vB = [k.v() for _ in range(4)]
    k(f'v_lshlrev_b32 {V(vA)}, 4, {V(vl)}')
    nA = [4, 4, 4, 2]; cB = [[0], [1], [2, 3], [4, 5, 6, 7]]
    k(f'v_lshrrev_b32 {V(vt)}, 3, {V(vl)}')
    k(f'v_lshlrev_b32 {V(vt)}, 12, {V(vt)}')
    k(f'v_lshrrev_b32 {V(vt2)}, 4, {V(vl)}')
    k(f'v_xor_b32 {V(vt2)}, {V(vt2)}, {V(vl)}')
    k(f'v_and_b32 {V(vt2)}, 7, {V(vt2)}')
    k(f'v_lshl_add_u32 {V(vt)}, {V(vt2)}, 4, {V(vt)}')
    k(f's_mul_i32 {S(sAo)}, {S(sFb)}, {32 * ASZ}')
    k(f's_lshl_b32 {S(sBo)}, {S(sTb)}, 18')
    k('s_waitcnt lgkmcnt(0)')
    mk_srd(k, srdA, sWS, 8 * 32 * ASZ, WS_Z2)
    mk_srd(k, srdB, sP, L * L * 2)
    Lw = [k.lbl(f'ld{w}') for w in range(4)]
    for w in range(1, 4):
        k(f's_cmp_eq_u32 {S(sW)}, {4 + w}')
        k(f's_cbranch_scc1 {Lw[w]}')
    for w in range(4):
        k.label(Lw[w])
        for i, c in enumerate(cB[w]):
            if c & 1: k(f'v_xor_b32 {V(vB[i])}, 64, {V(vt)}')
            else: k(f'v_mov_b32 {V(vB[i])}, {V(vt)}')
            add = c * 8 * 4096 - i * 1024
            if add: k(f'v_add_u32 {V(vB[i])}, {add}, {V(vB[i])}')
        if w: k(f's_add_u32 {S(sAo)}, {S(sAo)}, {w * 4096}')
        n = nA[w] + len(cB[w])
        def issue():
            k(f's_add_u32 m0, {S(sSl)}, {w * 4096}')
            for i in range(nA[w]):
                k(f'buffer_load_dwordx4 {V(vA)}, {S(srdA,4)}, {S(sAo)} offen offset:{i*1024} lds')
            k(f's_add_u32 m0, {S(sSl)}, {ASZ + cB[w][0] * 1024}')
            for i in range(len(cB[w])):
                k(f'buffer_load_dwordx4 {V(vB[i])}, {S(srdB,4)}, {S(sBo)} offen offset:{i*1024} lds')
            k(f's_add_u32 {S(sAo)}, {S(sAo)}, {ASZ}')
            k(f's_add_u32 {S(sBo)}, {S(sBo)}, 128')
            k(f's_add_u32 {S(sSl)}, {S(sSl)}, {SLOT}')
            k(f's_cmp_eq_u32 {S(sSl)}, {R * SLOT}')
            k(f's_cselect_b32 {S(sSl)}, 0, {S(sSl)}')
        k(f's_mov_b32 {S(sSl)}, 0')
        for s in range(R - 1): issue()
        k(f's_mov_b32 {S(sCnt)}, {NST - (R - 1)}')
        Lp = k.lbl('lp')
        k.label(Lp)
        k(f's_waitcnt vmcnt({n * (R - 2)})')
        k('s_barrier')
        issue()
        k(f's_sub_u32 {S(sCnt)}, {S(sCnt)}, 1')
        k(f's_cmp_lg_u32 {S(sCnt)}, 0')
        k(f's_cbranch_scc1 {Lp}')
        for s in range(R - 1):
            k(f's_waitcnt vmcnt({n * (R - 2 - s)})')
            k('s_barrier')
        if STAMPS:
            stamp(k, 10); stamp(k, 11, True); dump_stamps(k, sWS, 3, 12, vt)
        k('s_endpgm')
    k.label(L_cons)
    k.ns, k.nv = ns0, nv0
    sTc = k.s(); sFc = k.s(); sSl = k.s(); sCnt = k.s()
    srdZ = k.s(4); srdP = k.s(4); srdb = k.s(4)
    k(f's_and_b32 {S(sTc)}, {S(sW)}, 1')
    k(f's_lshr_b32 {S(sFc)}, {S(sW)}, 1')
    vAa0 = k.v(2, 2); vBa0 = k.v(4, 4); vAa = k.v(2, 2); vBa = k.v(4, 4)
    vhi = k.v(); vn = k.v(); vq = k.v(); vr = k.v()
    k(f'v_lshrrev_b32 {V(vhi)}, 5, {V(vl)}')
    k(f'v_and_b32 {V(vn)}, 31, {V(vl)}')
    k(f'v_bfe_u32 {V(vq)}, {V(vl)}, 4, 1')
    k(f'v_and_b32 {V(vt)}, 3, {V(vl)}')
    k(f'v_lshl_add_u32 {V(vq)}, {V(vq)}, 2, {V(vt)}')
    k(f'v_bfe_u32 {V(vr)}, {V(vl)}, 2, 2')
    k(f's_lshl_b32 {S(sTmp)}, {S(sFc)}, 13')
    k(f'v_lshlrev_b32 {V(vt)}, 9, {V(vq)}')
    k(f'v_lshl_add_u32 {V(vt)}, {V(vr)}, 3, {V(vt)}')
    k(f'v_add_u32 {V(vt)}, {S(sTmp)}, {V(vt)}')
    k(f'v_lshlrev_b32 {V(vt2)}, 1, {V(vhi)}')
    k(f'v_xor_b32 {V(vt2)}, {V(vt2)}, {V(vq)}')
    vAv = [k.v() for _ in range(4)]
    vAc = [k.v() for _ in range(4)]
    for kp in range(2):
        for h in range(2):
            x = 4 * kp + h
            k(f'v_xor_b32 {V(vAv[kp*2+h])}, {x}, {V(vt2)}')
            k(f'v_lshl_add_u32 {V(vAv[kp*2+h])}, {V(vAv[kp*2+h])}, 5, {V(vt)}')
    k(f's_lshl_b32 {S(sTmp)}, {S(sTc)}, 12')
    k(f's_add_u32 {S(sTmp)}, {S(sTmp)}, {ASZ}')
    k(f'v_lshlrev_b32 {V(vt)}, 7, {V(vn)}')
    k(f'v_add_u32 {V(vt)}, {S(sTmp)}, {V(vt)}')
    k(f'v_bfe_u32 {V(vt2)}, {V(vn)}, 1, 3')
    k(f'v_xor_b32 {V(vt2)}, {V(vt2)}, {V(vhi)}')
    for kk in range(4):
        k(f'v_xor_b32 {V(vBa0+kk)}, {2*kk}, {V(vt2)}')
        k(f'v_lshl_add_u32 {V(vBa0+kk)}, {V(vBa0+kk)}, 4, {V(vt)}')
    acc = [k.v(16, 4) for _ in range(2)]
    Af = [[[k.v(4, 4) for _ in range(2)] for _ in range(4)] for _ in range(2)]
    Bf = [[k.v(4, 4) for _ in range(4)] for _ in range(2)]
    z1 = [k.v(4, 4) for _ in range(4)]; vb = k.v(2, 2); vzo = k.v(); vpo = k.v()
    for a in acc:
        for i in range(16): k(f'v_mov_b32 {V(a+i)}, 0')
    k(f'v_lshlrev_b32 {V(vzo)}, 4, {V(vl)}')
    k(f's_lshl_b32 {S(sTmp)}, {S(sTb)}, 3')
    k(f's_add_u32 {S(sTmp)}, {S(sTmp)}, {S(sFb)}')
    k(f's_lshl_b32 {S(sTmp)}, {S(sTmp)}, 2')
    k(f's_add_u32 {S(sTmp)}, {S(sTmp)}, {S(sW)}')
    k(f's_lshl_b32 {S(sTmp)}, {S(sTmp)}, 12')
    k(f'v_add_u32 {V(vzo)}, {S(sTmp)}, {V(vzo)}')
    k(f's_mul_i32 {S(sTmp)}, {S(sTb)}, 54')
    k(f's_mul_i32 {S(sTmp2)}, {S(sFb)}, 7')
    k(f's_add_u32 {S(sTmp)}, {S(sTmp)}, {S(sTmp2)}')
    k(f's_lshl_b32 {S(sTmp2)}, {S(sFc)}, 2')
    k(f's_add_u32 {S(sTmp)}, {S(sTmp)}, {S(sTmp2)}')
    k(f's_lshl_b32 {S(sTmp)}, {S(sTmp)}, 11')
    k(f's_lshl_b32 {S(sTmp2)}, {S(sTc)}, 9')
    k(f's_add_u32 {S(sTmp)}, {S(sTmp)}, {S(sTmp2)}')
    k(f'v_lshlrev_b32 {V(vpo)}, 10, {V(vhi)}')
    k(f'v_lshl_add_u32 {V(vpo)}, {V(vn)}, 4, {V(vpo)}')
    k(f'v_add_u32 {V(vpo)}, {S(sTmp)}, {V(vpo)}')
    k(f's_lshl_b32 {S(sTmp)}, {S(sTb)}, 6')
    k(f's_lshl_b32 {S(sTmp2)}, {S(sTc)}, 5')
    k(f's_add_u32 {S(sTmp)}, {S(sTmp)}, {S(sTmp2)}')
    k(f'v_add_u32 {V(vt)}, {S(sTmp)}, {V(vn)}')
    k(f'v_lshlrev_b32 {V(vt)}, 1, {V(vt)}')
    k('s_waitcnt lgkmcnt(0)')
    stamp(k, 2)
    mk_srd(k, srdZ, sWS, 0x400000, WS_Z1)
    mk_srd(k, srdb, sP + 2, L * 2)
    mk_srd(k, srdP, sWS, L * FH * 2, WS_P)
    k(f'buffer_load_ushort {V(vb)}, {V(vt)}, {S(srdb,4)}, 0 offen')
    for j in range(4):
        k(f'buffer_load_dwordx4 {V(z1[j],4)}, {V(vzo)}, {S(srdZ,4)}, 0 offen offset:{j*1024}')
    k(f's_mov_b32 {S(sSl)}, 0')
    def reads(st):
        o = []
        for kk in range(4):
            o.append(f'ds_read_b128 {V(Bf[st][kk],4)}, {V(vBa+kk)}')
            for mi in range(2):
                for h in range(2):
                    o.append(f'ds_read_b64_tr_b16 {V(Af[st][kk][mi]+2*h,2)}, {V(vAc[(kk&1)*2+h])} offset:{mi*4096 + (kk>>1)*256}')
        return o
    def mfmas(st):
        return [f'v_mfma_f32_32x32x16_bf16 {V(acc[mi],16)}, {V(Af[st][kk][mi],4)}, {V(Bf[st][kk],4)}, {V(acc[mi],16)}' for kk in range(4) for mi in range(2)]
    def addr_update():
        for i in range(4): k(f'v_add_u32 {V(vAc[i])}, {S(sSl)}, {V(vAv[i])}')
        for i in range(4): k(f'v_add_u32 {V(vBa+i)}, {S(sSl)}, {V(vBa0+i)}')
        k(f's_add_u32 {S(sSl)}, {S(sSl)}, {SLOT}')
        k(f's_cmp_eq_u32 {S(sSl)}, {R * SLOT}')
        k(f's_cselect_b32 {S(sSl)}, 0, {S(sSl)}')
    def stage(st, with_mfma=True):
        k('s_barrier')
        rd = reads(st); mf = mfmas(1 - st) if with_mfma else []
        ri = 0
        for mi_, m in enumerate(mf):
            tgt = min(len(rd), 3 * (mi_ + 1) + 1)
            while ri < tgt: k(rd[ri]); ri += 1
            k(m)
        while ri < len(rd): k(rd[ri]); ri += 1
        addr_update()
        k('s_waitcnt lgkmcnt(0)')
    addr_update()
    stage(0, False)
    stamp(k, 3)
    stage(1)
    k(f's_mov_b32 {S(sCnt)}, {(NST - 2) // 2}')
    Lp = k.lbl('clp')
    k.label(Lp)
    stage(0); stage(1)
    k(f's_sub_u32 {S(sCnt)}, {S(sCnt)}, 1')
    k(f's_cmp_lg_u32 {S(sCnt)}, 0')
    k(f's_cbranch_scc1 {Lp}')
    for m in mfmas(1): k(m)
    stamp(k, 4)
    k('s_waitcnt vmcnt(0)')
    k(f'v_lshlrev_b32 {V(vb)}, 16, {V(vb)}')
    ta = k.v(2, 2)
    sNp = k.s()
    k(f's_cmp_eq_u32 {S(sFb)}, 7')
    k(f's_cselect_b32 {S(sNp)}, 1, 3')
    k(f's_cmp_eq_u32 {S(sFc)}, 0')
    k(f's_cselect_b32 {S(sNp)}, 4, {S(sNp)}')
    L_done = k.lbl('done')
    for j in range(4):
        if j:
            k(f's_cmp_le_u32 {S(sNp)}, {j}')
            k(f's_cbranch_scc1 {L_done}')
        a0 = acc[j >> 1] + 8 * (j & 1)
        for d in range(4):
            a = a0 + 2 * d
            k(f'v_cvt_pk_bf16_f32 {V(a)}, {V(a)}, {V(a+1)}')
            k(f'v_and_b32 {V(a+1)}, 0xffff0000, {V(a)}'); k(f'v_lshlrev_b32 {V(a)}, 16, {V(a)}')
            k(f'v_pk_add_f32 {V(a,2)}, {V(a,2)}, {V(vb,2)} op_sel_hi:[1,0]')
            k(f'v_cvt_pk_bf16_f32 {V(a)}, {V(a)}, {V(a+1)}')
            k(f'v_and_b32 {V(a+1)}, 0xffff0000, {V(a)}'); k(f'v_lshlrev_b32 {V(a)}, 16, {V(a)}')
            unpack(k, ta, ta + 1, z1[j] + d)
            k(f'v_pk_mul_f32 {V(a,2)}, {V(a,2)}, {V(ta,2)}')
            k(f'v_cvt_pk_bf16_f32 {V(z1[j]+d)}, {V(a)}, {V(a+1)}')
        if j < 2:
            k(f'buffer_store_dwordx4 {V(z1[j],4)}, {V(vpo)}, {S(srdP,4)}, 0 offen offset:{j*2048}')
        else:
            if j == 2: k(f'v_add_u32 {V(vpo)}, 4096, {V(vpo)}')
            k(f'buffer_store_dwordx4 {V(z1[j],4)}, {V(vpo)}, {S(srdP,4)}, 0 offen offset:{(j-2)*2048}')
    k.label(L_done)
    if STAMPS:
        stamp(k, 5); k('s_waitcnt vmcnt(0)'); stamp(k, 10); stamp(k, 11, True); dump_stamps(k, sWS, 3, 12, vt)
    k.label(L_end)
    k('s_endpgm')
    return k

if __name__ == '__main__':
    s = build_file([gen_k4()])
    open('t_p4.s', 'w').write(s)
```

```python
from common import *

def tile_ids(k, sTb, sFb, sTmp):
    k(f's_bfe_u32 {S(sTb)}, s2, 0x20001')
    k(f's_lshl_b32 {S(sTb)}, {S(sTb)}, 3')
    k(f's_lshr_b32 {S(sTmp)}, s2, 5')
    k(f's_add_u32 {S(sTb)}, {S(sTb)}, {S(sTmp)}')
    k(f's_and_b32 {S(sFb)}, s2, 1')
    k(f's_lshl_b32 {S(sFb)}, {S(sFb)}, 2')
    k(f's_bfe_u32 {S(sTmp)}, s2, 0x20003')
    k(f's_add_u32 {S(sFb)}, {S(sFb)}, {S(sTmp)}')

def gen_k5():
    R = 5; NST = 9; ASZ = 15360; BSZ = 12288; SLOT = ASZ + BSZ; HOFF = R * SLOT
    k = Kernel('p5_kernel', lds=HOFF + 10240, grid=256, block=512)
    k.ns = 4; k.nv = 1
    L_end = k.lbl('end')
    sWS = k.s(2); sP = k.s(4, 4)
    k('s_cmp_ge_u32 s2, 256')
    k(f's_cbranch_scc1 {L_end}')
    stamp(k, 0, True); stamp(k, 1)
    load_ptr(k, sWS, 'ws')
    k(f's_load_dwordx4 {S(sP,4)}, s[0:1], {KA["wout"]}')
    sW = k.s(); sTb = k.s(); sDb = k.s(); sTmp = k.s(); sTmp2 = k.s()
    vl = k.v(); vt = k.v(); vt2 = k.v()
    k(f'v_lshrrev_b32 {V(vt)}, 6, v0')
    k(f'v_and_b32 {V(vl)}, 63, v0')
    k(f'v_readfirstlane_b32 {S(sW)}, {V(vt)}')
    tile_ids(k, sTb, sDb, sTmp)
    L_cons = k.lbl('cons')
    k(f's_cmp_lt_u32 {S(sW)}, 4')
    k(f's_cbranch_scc1 {L_cons}')
    ns0, nv0 = k.ns, k.nv
    srdA = k.s(4); srdB = k.s(4); srdH = k.s(4); sAo = k.s(); sBo = k.s(); sLa = k.s(); sLb = k.s()
    vA = [k.v() for _ in range(5)]; vB = k.v(); vH = k.v()
    k(f'v_lshlrev_b32 {V(vB)}, 4, {V(vl)}')
    for i in range(5):
        k(f'v_add_u32 {V(vt)}, {64*i}, {V(vl)}')
        k(f'v_mul_u32_u24 {V(vt2)}, 6554, {V(vt)}')
        k(f'v_lshrrev_b32 {V(vt2)}, 16, {V(vt2)}')
        k(f'v_mul_u32_u24 {V(vA[i])}, {1280 - 160}, {V(vt2)}')
        k(f'v_lshl_add_u32 {V(vA[i])}, {V(vt)}, 4, {V(vA[i])}')
        if i % 4: k(f'v_subrev_u32 {V(vA[i])}, {(i % 4) * 1024}, {V(vA[i])}')
    k(f'v_lshrrev_b32 {V(vH)}, 3, {V(vl)}')
    k(f'v_lshlrev_b32 {V(vH)}, 12, {V(vH)}')
    k(f'v_and_b32 {V(vt)}, 7, {V(vl)}')
    k(f'v_lshl_add_u32 {V(vH)}, {V(vt)}, 4, {V(vH)}')
    k(f's_sub_u32 {S(sTmp)}, {S(sW)}, 4')
    k(f's_mul_i32 {S(sAo)}, {S(sTmp)}, {32 * 1280}')
    k(f's_mul_i32 {S(sTmp2)}, {S(sDb)}, 160')
    k(f's_add_u32 {S(sAo)}, {S(sAo)}, {S(sTmp2)}')
    k(f's_mul_i32 {S(sLa)}, {S(sTmp)}, 5120')
    k(f's_lshl_b32 {S(sLb)}, {S(sTmp)}, 11')
    k(f's_mul_i32 {S(sBo)}, {S(sTb)}, {54 * 2048}')
    k(f's_add_u32 {S(sBo)}, {S(sBo)}, {S(sLb)}')
    k(f's_add_u32 {S(sLb)}, {S(sLb)}, {ASZ}')
    k('s_waitcnt lgkmcnt(0)')
    mk_srd(k, srdA, sP, FH * D * 2)
    mk_srd(k, srdB, sWS, L * FH * 2, WS_P)
    mk_srd(k, srdH, sWS, L * D * 2, WS_HT)
    L3 = k.lbl('ld3')
    k(f's_cmp_eq_u32 {S(sW)}, 7')
    k(f's_cbranch_scc1 {L3}')
    for var in range(2):
        if var == 1: k.label(L3)
        n = 7 if var == 0 else 6
        def issue(s):
            sl = (s % R) * SLOT
            if var == 0:
                k(f's_add_u32 m0, {S(sLb)}, {sl}')
                for i in range(2): k(f'buffer_load_dwordx4 {V(vB)}, {S(srdB,4)}, {S(sBo)} offen offset:{i*1024} lds')
                k(f's_add_u32 m0, {S(sLa)}, {sl}')
                for i in range(4): k(f'buffer_load_dwordx4 {V(vA[i])}, {S(srdA,4)}, {S(sAo)} offen offset:{i*1024} lds')
                k(f's_add_u32 m0, {S(sLa)}, {sl + 4096}')
                k(f'buffer_load_dwordx4 {V(vA[4])}, {S(srdA,4)}, {S(sAo)} offen lds')
                k(f's_add_u32 {S(sAo)}, {S(sAo)}, {96 * 1280}')
            else:
                k(f's_add_u32 m0, {S(sLb)}, {sl}')
                for i in range(4): k(f'buffer_load_dwordx4 {V(vB)}, {S(srdB,4)}, {S(sBo)} offen offset:{i*1024} lds')
                k(f's_add_u32 m0, {S(sLb)}, {sl + 4096}')
                k(f's_add_u32 {S(sTmp)}, {S(sBo)}, 4096')
                for i in range(2): k(f'buffer_load_dwordx4 {V(vB)}, {S(srdB,4)}, {S(sTmp)} offen offset:{i*1024} lds')
            k(f's_add_u32 {S(sBo)}, {S(sBo)}, {BSZ}')
        issued = []
        for s in range(R - 1):
            issue(s); issued.append(n)
        for s in range(NST):
            out_after = sum(issued[s + 1:])
            k(f's_waitcnt vmcnt({min(out_after, 63)})')
            k('s_barrier')
            if s + R - 1 < NST:
                issue(s + R - 1); issued.append(n)
                if var == 1 and s + R - 1 == NST - 1:
                    k(f's_mul_i32 {S(sTmp)}, {S(sDb)}, {80 * 4096}')
                    k(f's_lshl_b32 {S(sTmp2)}, {S(sTb)}, 7')
                    k(f's_add_u32 {S(sTmp)}, {S(sTmp)}, {S(sTmp2)}')
                    for c in range(10):
                        k(f's_mov_b32 m0, {HOFF + c * 1024}')
                        k(f'buffer_load_dwordx4 {V(vH)}, {S(srdH,4)}, {S(sTmp)} offen lds')
                        k(f's_add_u32 {S(sTmp)}, {S(sTmp)}, {8 * 4096}')
                    issued[-1] += 10
        if STAMPS:
            stamp(k, 10); stamp(k, 11, True); dump_stamps(k, sWS, 4, 12, vt)
        k('s_endpgm')
    k.label(L_cons)
    k.ns, k.nv = ns0, nv0
    srdO = k.s(4)
    vg = k.v(); vn = k.v(); vA0 = k.v(); vB0 = k.v(); vAa = k.v(); vBa = k.v(); vHa = k.v(); vOo = k.v()
    k(f'v_lshrrev_b32 {V(vg)}, 4, {V(vl)}')
    k(f'v_and_b32 {V(vn)}, 15, {V(vl)}')
    k(f'v_lshrrev_b32 {V(vt)}, 1, {V(vg)}')
    k(f'v_lshlrev_b32 {V(vt)}, 4, {V(vt)}')
    k(f'v_and_b32 {V(vt2)}, 1, {V(vg)}')
    k(f'v_lshl_add_u32 {V(vt)}, {V(vt2)}, 2, {V(vt)}')
    k(f'v_bfe_u32 {V(vt2)}, {V(vl)}, 2, 2')
    k(f'v_add_u32 {V(vt)}, {V(vt)}, {V(vt2)}')
    k(f'v_mul_u32_u24 {V(vA0)}, 160, {V(vt)}')
    k(f'v_and_b32 {V(vt)}, 3, {V(vl)}')
    k(f'v_lshl_add_u32 {V(vA0)}, {V(vt)}, 3, {V(vA0)}')
    k(f'v_lshl_add_u32 {V(vHa)}, {V(vg)}, 2, {V(vt2)}')
    k(f'v_lshlrev_b32 {V(vHa)}, 7, {V(vHa)}')
    k(f'v_lshl_add_u32 {V(vHa)}, {V(vt)}, 3, {V(vHa)}')
    k(f's_lshl_b32 {S(sTmp)}, {S(sW)}, 5')
    k(f's_add_u32 {S(sTmp)}, {S(sTmp)}, {HOFF}')
    k(f'v_add_u32 {V(vHa)}, {S(sTmp)}, {V(vHa)}')
    k(f'v_lshlrev_b32 {V(vB0)}, 10, {V(vg)}')
    k(f'v_lshl_add_u32 {V(vB0)}, {V(vn)}, 4, {V(vB0)}')
    k(f's_lshl_b32 {S(sTmp)}, {S(sW)}, 8')
    k(f's_add_u32 {S(sTmp)}, {S(sTmp)}, {ASZ}')
    k(f'v_add_u32 {V(vB0)}, {S(sTmp)}, {V(vB0)}')
    k(f's_lshl_b32 {S(sTmp)}, {S(sTb)}, 6')
    k(f's_lshl_b32 {S(sTmp2)}, {S(sW)}, 4')
    k(f's_add_u32 {S(sTmp)}, {S(sTmp)}, {S(sTmp2)}')
    k(f'v_add_u32 {V(vOo)}, {S(sTmp)}, {V(vn)}')
    k(f'v_mul_u32_u24 {V(vOo)}, 1280, {V(vOo)}')
    k(f'v_lshl_add_u32 {V(vOo)}, {V(vg)}, 3, {V(vOo)}')
    k(f's_mul_i32 {S(sTmp)}, {S(sDb)}, 160')
    k(f'v_add_u32 {V(vOo)}, {S(sTmp)}, {V(vOo)}')
    acc = [k.v(4, 4) for _ in range(5)]
    Af = [[[k.v(4, 4) for _ in range(5)] for _ in range(3)] for _ in range(2)]
    Bf = [[k.v(4, 4) for _ in range(3)] for _ in range(2)]
    for a in acc:
        for i in range(4): k(f'v_mov_b32 {V(a+i)}, 0')
    k('s_waitcnt lgkmcnt(0)')
    stamp(k, 2)
    mk_srd(k, srdO, sP + 2, L * D * 2)
    def reads(st):
        o = []
        for J in range(3):
            o.append(f'ds_read_b128 {V(Bf[st][J],4)}, {V(vBa)} offset:{J*4096}')
            for dt in range(5):
                for h in range(2):
                    o.append(f'ds_read_b64_tr_b16 {V(Af[st][J][dt]+2*h,2)}, {V(vAa)} offset:{J*5120 + h*1280 + dt*32}')
        return o
    def mfmas(st):
        return [f'v_mfma_f32_16x16x32_bf16 {V(acc[dt],4)}, {V(Af[st][J][dt],4)}, {V(Bf[st][J],4)}, {V(acc[dt],4)}' for J in range(3) for dt in range(5)]
    for s in range(NST):
        st = s & 1
        sl = (s % R) * SLOT
        k(f'v_add_u32 {V(vAa)}, {sl}, {V(vA0)}') if sl else k(f'v_mov_b32 {V(vAa)}, {V(vA0)}')
        k(f'v_add_u32 {V(vBa)}, {sl}, {V(vB0)}') if sl else k(f'v_mov_b32 {V(vBa)}, {V(vB0)}')
        k('s_barrier')
        rd = reads(st); mf = mfmas(1 - st) if s else []
        ri = 0
        for mi_, m in enumerate(mf):
            tgt = min(len(rd), (len(rd) * (mi_ + 1)) // 13 + 1)
            while ri < tgt: k(rd[ri]); ri += 1
            k(m)
        while ri < len(rd): k(rd[ri]); ri += 1
        if s == NST - 1:
            hb = Af[1 - st][0]
            k('s_nop 4')
            for dt in range(5): k(f'ds_read_b64_tr_b16 {V(hb[dt],2)}, {V(vHa)} offset:{dt*2048}')
        k('s_waitcnt lgkmcnt(0)')
        if s == 0: stamp(k, 3)
    for m in mfmas((NST - 1) & 1): k(m)
    stamp(k, 4)
    for dt in range(5):
        a = acc[dt]; h = hb[dt]
        unpack(k, h + 2, h + 3, h + 1)
        k(f'v_and_b32 {V(h+1)}, 0xffff0000, {V(h)}'); k(f'v_lshlrev_b32 {V(h)}, 16, {V(h)}')
    for dt in range(5):
        a = acc[dt]; h = hb[dt]
        for q in range(2): k(f'v_cvt_pk_bf16_f32 {V(a+2*q)}, {V(a+2*q)}, {V(a+2*q+1)}')
        for q in range(2):
            k(f'v_and_b32 {V(a+2*q+1)}, 0xffff0000, {V(a+2*q)}'); k(f'v_lshlrev_b32 {V(a+2*q)}, 16, {V(a+2*q)}')
        for q in range(2): k(f'v_pk_add_f32 {V(a+2*q,2)}, {V(a+2*q,2)}, {V(h+2*q,2)}')
        for q in range(2): k(f'v_cvt_pk_bf16_f32 {V(h+q)}, {V(a+2*q)}, {V(a+2*q+1)}')
        k(f'buffer_store_dwordx2 {V(h,2)}, {V(vOo)}, {S(srdO,4)}, 0 offen offset:{dt*32}')
    if STAMPS:
        stamp(k, 5); k('s_waitcnt vmcnt(0)'); stamp(k, 10); stamp(k, 11, True); dump_stamps(k, sWS, 4, 12, vt)
    k.label(L_end)
    k('s_endpgm')
    return k

if __name__ == '__main__':
    from k4 import gen_k4
    s = build_file([gen_k4(), gen_k5()])
    open('t_p5.s', 'w').write(s)
```

```python
import sys
from common import *
from k1 import gen_k1
from k2 import gen_k2
from k3 import gen_k3
from k4 import gen_k4
from k5 import gen_k5
out = sys.argv[1] if len(sys.argv) > 1 else 'all.s'
hdr = open('sequential_preLN__ssm_conv_s4d__mixer_gmlp__prompt.s.ref').read().split('; Override launch')[0]
s = build_file([gen_k1(), gen_k2(), gen_k3(), gen_k4(), gen_k5()], header=hdr)
open(out, 'w').write(s)
```

```python
from common import *
from k1 import gen_k1
from k2 import gen_k2
from k3 import gen_k3
from k4 import gen_k4
from k5 import gen_k5
def nopk():
    k = Kernel('nop_kernel', lds=0, grid=256, block=256)
    k('v_mov_b32 v1, 0'); k('s_endpgm'); return k
hdr = open('sequential_preLN__ssm_conv_s4d__mixer_gmlp__prompt.s.ref').read().split('; Override launch')[0]
import os
os.makedirs('var', exist_ok=True)
def base(): return [gen_k1(), gen_k2(), gen_k3(), gen_k4(), gen_k5()]
n = nopk(); open('a2.s', 'w').write(build_file(base() + [n, n], header=hdr))
n = nopk(); open('a4.s', 'w').write(build_file(base() + [n, n, n, n], header=hdr))
n = nopk(); open('b2.s', 'w').write(build_file([n, n] + base(), header=hdr))
open('a0.s', 'w').write(build_file(base(), header=hdr))
```
